```python
import torch

def _softmax(x, axis=-1):
    return torch.softmax(x, dim=axis)
def _gelu(x):
    return torch.nn.functional.gelu(x, approximate="tanh")
def _silu(x):
    return torch.nn.functional.silu(x)
def _sigmoid(x):
    return torch.sigmoid(x)
def _layernorm(x, axis=-1, eps=1e-5):
    m = x.mean(dim=axis, keepdim=True)
    v = x.var(dim=axis, keepdim=True, unbiased=False)
    return (x - m) / torch.sqrt(v + eps)
def _scatter_add(tgt, idx, src, axis=0):
    return tgt.clone().index_add_(axis, idx, src)
def _segment_sum(src, seg, n):
    out = torch.zeros((n,) + src.shape[1:], dtype=src.dtype)
    return out.index_add_(0, seg, src)
def _pad(x, pw):
    flat = tuple(v for pair in reversed(pw) for v in pair)
    return torch.nn.functional.pad(x, flat)

kernel_name = 'parallel_sum__sliding_block_cached__dense_activation_relu__decode'

def setup_inputs():

    _w = (lambda a: (lambda t: t.to(torch.bfloat16) if t.is_floating_point() else t)(torch.as_tensor(a)))
    def _A_setup():
        B, Sq, D = 1, 1, 512
        Hq, Hkv, Sk, Dh = 32, 8, 65536, 128
        assert Hq % Hkv == 0, (Hq, Hkv)
        return {
            "x": _w((lambda *s: torch.randn(*s, dtype=torch.bfloat16) * 0.05)(B, Sq, D)),
            "k_cache": _w((lambda *s: torch.randn(*s, dtype=torch.bfloat16) * 3.2)(B, Hkv, Sk, Dh)),
            "v_cache": _w((lambda *s: torch.randn(*s, dtype=torch.bfloat16) * 1.6)(B, Hkv, Sk, Dh)),
            "wq": _w((lambda *s: torch.randn(*s, dtype=torch.bfloat16) * 3.2)(D, Hq * Dh) * (D ** -0.5)),
            "wo": _w((lambda *s: torch.randn(*s, dtype=torch.bfloat16) * 1.6)(Hq * Dh, D) * ((Hq * Dh) ** -0.5)),
        }
    _A_in = _A_setup()

    def _B_setup():
        B, S, D, Dff = 1, 1, 512, 1792
        return {
            "x": _w((lambda *s: torch.randn(*s, dtype=torch.bfloat16) * 0.05)(B, S, D)),
            "w1": _w((lambda *s: torch.randn(*s, dtype=torch.bfloat16) * 0.05)(D, Dff)),
            "w2": _w((lambda *s: torch.randn(*s, dtype=torch.bfloat16) * 0.05)(Dff, D)),
        }
    _B_in = _B_setup()

    return {
        "A_x": _A_in["x"],
        "A_k_cache": _A_in["k_cache"],
        "A_v_cache": _A_in["v_cache"],
        "A_wq": _A_in["wq"],
        "A_wo": _A_in["wo"],
        "B_x": _B_in["x"],
        "B_w1": _B_in["w1"],
        "B_w2": _B_in["w2"],
    }

def reference(A_x, A_k_cache, A_v_cache, A_wq, A_wo, B_x, B_w1, B_w2):
    def _A_ref(x, k_cache, v_cache, wq, wo):
        B, Sq, D = x.shape
        Hq, Dh = 32, 128
        Hkv, Sk = k_cache.shape[1], k_cache.shape[2]
        W = min(4096, max(256, Sk // 4))
        rep = Hq // Hkv
        q = (lambda x, *d: x.permute(*d))((x @ wq).reshape(B, Sq, Hq, Dh), 0, 2, 1, 3)
        k = (lambda x, n, axis: torch.repeat_interleave(x, n, dim=axis))(k_cache[:, :, Sk - W:, :], rep, axis=1)
        v = (lambda x, n, axis: torch.repeat_interleave(x, n, dim=axis))(v_cache[:, :, Sk - W:, :], rep, axis=1)
        scores = torch.einsum("bhqd,bhkd->bhqk", q, k) * (Dh ** -0.5)
        p = _softmax(scores, axis=-1)
        o = torch.einsum("bhqk,bhkd->bhqd", p, v)
        return (lambda x, *d: x.permute(*d))(o, 0, 2, 1, 3).reshape(B, Sq, Hq * Dh) @ wo

    def _B_ref(x, w1, w2):
        h = torch.einsum("bsd,df->bsf", x, w1)
        zero = torch.zeros_like(h)
        h = torch.maximum(h, zero)
        return torch.einsum("bsf,fd->bsd", h, w2)

    x = A_x
    xn = _layernorm(x, axis=-1)
    return x + _A_ref(xn, A_k_cache, A_v_cache, A_wq, A_wo) + _B_ref(xn, B_w1, B_w2)
```

```python
import re

TRANS = ("v_exp_f32", "v_log_f32", "v_rcp_f32", "v_rsq_f32", "v_sqrt_f32", "v_sin_f32", "v_cos_f32")

def regs_of(tok):
    tok = tok.strip()
    tok = tok.lstrip("-").replace("abs(", "").replace(")", "").replace("|", "")
    m = re.fullmatch(r"([vs])\[(\d+):(\d+)\]", tok)
    if m:
        return [f"{m.group(1)}{i}" for i in range(int(m.group(2)), int(m.group(3)) + 1)]
    m = re.fullmatch(r"([vs])(\d+)", tok)
    if m:
        return [tok]
    if tok in ("vcc", "exec"):
        return [tok]
    return []

class Asm:
    def __init__(self):
        self.lines = []
        self.hist = []

    def raw(self, text):
        self.lines.append(text)

    def label(self, name):
        self.lines.append(f"{name}:")
        self.lines.append("    s_nop 7")
        self.hist = []

    def comment(self, t):
        self.lines.append(f"    ; {t}")

    def _split(self, text):
        text = text.split(";")[0].strip()
        parts = text.split(None, 1)
        op = parts[0]
        rest = parts[1] if len(parts) > 1 else ""
        rest = re.sub(r"\s*,\s*", ",", rest.strip())
        rest = rest.split()[0] if rest else ""
        ops = [o.strip() for o in rest.split(",")]
        return op, [o for o in ops if o]

    def __call__(self, text):
        op, ops = self._split(text)
        is_dpp = "_dpp" in op or "quad_perm" in text or "row_" in text
        kind = None
        dsts, srcs = [], []
        if op.startswith("v_"):
            kind = "valu"
            if op.startswith("v_cmp"):
                dsts = regs_of(ops[0]); srcs = sum((regs_of(o) for o in ops[1:]), [])
            elif op.startswith("v_permlane"):
                dsts = regs_of(ops[0]) + regs_of(ops[1]); srcs = list(dsts)
            elif op.startswith("v_mfma"):
                kind = "mfma"
                dsts = regs_of(ops[0]); srcs = sum((regs_of(o) for o in ops[1:]), [])
            else:
                dsts = regs_of(ops[0]); srcs = sum((regs_of(o) for o in ops[1:]), [])
                if op.startswith("v_dot2c") or op.startswith("v_fmac"):
                    srcs += dsts
                if op.startswith("v_cndmask") and len(ops) == 3:
                    srcs.append("vcc")
        elif op.startswith("global_") or op.startswith("buffer_") or op.startswith("ds_"):
            kind = "mem"
            if "load" in op or op.startswith("ds_read") or op.startswith("ds_bperm"):
                dsts = regs_of(ops[0]); srcs = sum((regs_of(o) for o in ops[1:]), [])
            else:
                srcs = sum((regs_of(o) for o in ops), [])
        elif op.startswith("s_"):
            kind = "salu"
            if op in ("s_nop", "s_waitcnt", "s_barrier", "s_sleep", "s_branch", "s_endpgm") or op.startswith("s_cbranch") or op.startswith("s_cmp"):
                srcs = sum((regs_of(o) for o in ops), [])
            else:
                dsts = regs_of(ops[0]); srcs = sum((regs_of(o) for o in ops[1:]), [])
        need = 0
        dist = 0
        for (k, o, d, s, cost) in reversed(self.hist):
            req = 0
            ds = set(d)
            rd = ds & set(srcs)
            wr = ds & set(dsts)
            if k == "valu":
                vrd = [r for r in rd if r.startswith("v") and r != "vcc"]
                srd = [r for r in rd if r.startswith("s") or r in ("vcc",)]
                if kind == "valu" and is_dpp and vrd: req = max(req, 2)
                if op.startswith("v_permlane") and (vrd or wr): req = max(req, 2)
                if o in TRANS and kind in ("valu", "mfma") and op not in TRANS and vrd: req = max(req, 1)
                if op.startswith("v_readlane") or op.startswith("v_readfirstlane"):
                    if vrd: req = max(req, 1)
                    if srd: req = max(req, 4)
                if srd and kind in ("valu", "mfma"): req = max(req, 2)
                if srd and kind == "mem": req = max(req, 5)
                if srd and kind == "salu": req = max(req, 2)
                if kind == "mfma" and vrd: req = max(req, 2)
                if o.startswith("v_dot2") and (vrd or wr):
                    if not (op == o and not (ds & set(sum((regs_of(x) for x in ops[1:3]), [])))):
                        req = max(req, 3)
                if "exec" in ds and is_dpp: req = max(req, 5)
            if k == "mfma":
                if kind == "mfma":
                    ab = set(sum((regs_of(x) for x in ops[1:3]), []))
                    if ds & ab: req = max(req, 8)
                    c = set(regs_of(ops[3]))
                    if (ds & c) and ds != c: req = max(req, 6)
                elif rd or wr:
                    req = max(req, 8)
            if k == "mem" and ("store" in o or "write" in o) and ("x4" in o or "x3" in o or "b128" in o or "b96" in o):
                if kind in ("valu", "mfma") and set(s) & set(dsts): req = max(req, 2)
            if req > dist:
                need = max(need, req - dist)
            dist += cost
            if dist > 12: break
        if need > 0:
            self.lines.append(f"    s_nop {need-1}")
            self.hist.append(("salu", "s_nop", [], [], need))
        self.lines.append("    " + text)
        cost = 1
        if op == "s_nop":
            cost = int(ops[0]) + 1
        self.hist.append((kind, op, dsts, srcs, cost))
        if len(self.hist) > 40:
            self.hist = self.hist[-40:]

    def text(self):
        return "\n".join(self.lines) + "\n"
```

```python
import sys
from asmlib import Asm

NAME = "parallel_sum__sliding_block_cached__dense_activation_relu__decode"
STAMPS = "--stamps" in sys.argv
N1 = 8
SPIN_CAP = 400000

L_XN = 0
L_PART = 1024
L_H = 1792
L_FLAG = 1824
L_ML = 2048
L_O = 4096
L_AB = 20480
LDS_BYTES = 90112

R_F = 0
R_O = 4096
R_ML = 6144
R_Q = 6176

a = Asm()

vTID, vL = "v0", "v1"
def T(i): return f"v{2+i}"
vX = 20
vXF = "v24"
vXP = "v25"
vNANP = "v26"
vNANF = "v27"
vWQ = 28
vW1 = 36
vK = 40
vV = 56
vWO = 72
vW2 = 80
vQ = 84
vD = 100
vA = 104
vOFF = 120
vP = 136
NVGPR = 152
def v(i): return f"v{i}"
def vr(i, n): return f"v[{i}:{i+n-1}]"

SEL_LO, SEL_HI = "s46", "s47"
sP0 = 68
nstamp = [0]
def stamp():
    if not STAMPS: return
    i = nstamp[0]; nstamp[0] += 1
    assert i < 10
    a("s_memtime s[100:101]")
    a("s_waitcnt lgkmcnt(0)")
    a(f"s_mov_b32 s{58+i}, s100")

DPP = "row_mask:0xf bank_mask:0xf"
def red16(op, regs):
    for pat in ("quad_perm:[1,0,3,2]", "quad_perm:[2,3,0,1]", "row_half_mirror", "row_mirror"):
        for r in regs:
            a(f"{op}_dpp {r}, {r}, {r} {pat} {DPP}")
def swapred(op, regs, tmps, which):
    for r, t in zip(regs, tmps):
        a(f"v_mov_b32 {t}, {r}")
    for r, t in zip(regs, tmps):
        a(f"v_permlane{which}_swap_b32 {r}, {t}")
    for r, t in zip(regs, tmps):
        a(f"{op} {r}, {r}, {t}")
def red32(op, regs, tmps):
    red16(op, regs); swapred(op, regs, tmps, 16)
def red64(op, regs, tmps):
    red32(op, regs, tmps); swapred(op, regs, tmps, 32)

def bf16r(dst, src, tmp):
    a(f"v_cvt_pk_bf16_f32 {tmp}, {src}, {src}")
    a(f"v_lshlrev_b32 {dst}, 16, {tmp}")

def canon(reg, nanreg):
    a(f"v_cmp_eq_u32 vcc, -1, {reg}")
    a(f"v_cndmask_b32 {reg}, {reg}, {nanreg}, vcc")

def exec_set(lo, hi):
    a(f"s_mov_b32 exec_lo, {lo:#x}")
    a(f"s_mov_b32 exec_hi, {hi:#x}")
def exec_all():
    a("s_mov_b64 exec, -1")

def add64(dst, base, off):
    a(f"s_add_u32 s{dst}, s{base}, {off}")
    a(f"s_addc_u32 s{dst+1}, s{base+1}, 0")

a.raw(f"""; Kernarg layout: x, k_cache, v_cache, wq, wo, B_x, w1, w2, out, debug, ws (8-byte pointers)
; @launch grid=(256,1,1) block=(512,1,1) lds={LDS_BYTES}
.amdgcn_target "amdgcn-amd-amdhsa--gfx950"
.text
.globl {NAME}_kernel
.p2align 8
.type {NAME}_kernel,@function
{NAME}_kernel:""")

a("s_cmp_ge_u32 s2, 256")
a("s_cbranch_scc1 L_end")
a("s_load_dwordx16 s[4:19], s[0:1], 0")
a("s_load_dwordx4 s[20:23], s[0:1], 64")
a("s_load_dwordx2 s[24:25], s[0:1], 80")
stamp()
a(f"v_and_b32 {vL}, 63, {vTID}")
a(f"v_lshrrev_b32 {T(0)}, 6, {vTID}")
a(f"v_readfirstlane_b32 s26, {T(0)}")
a("s_and_b32 s27, s2, 7")
a("s_lshr_b32 s28, s2, 3")
a(f"s_mov_b32 {SEL_LO}, 0x05040100")
a(f"s_mov_b32 {SEL_HI}, 0x07060302")
a("s_mov_b32 s53, 0x3fb8aa3b")
a("s_mov_b32 s54, 0x3db504f3")
a("s_mov_b32 s52, 0")
a(f"v_mov_b32 {vNANP}, 0x7fc07fc0")
a(f"v_mov_b32 {vNANF}, 0x7fc00000")
a("s_mul_i32 s29, s27, 28")
a("s_add_u32 s29, s29, s28")
a("s_cmp_lt_u32 s28, 28")
a("s_cselect_b32 s29, s29, 0")
a("s_cselect_b32 s48, -1, 0")
a(f"v_lshlrev_b32 {T(1)}, 4, {vTID}")
for i in range(4):
    a(f"v_mov_b32 {T(2+i)}, -1")
a(f"v_lshlrev_b32 {v(vOFF+0)}, 4, {vL}")
a(f"v_and_b32 {T(6)}, 31, {vL}")
a(f"v_lshrrev_b32 {T(7)}, 5, {vL}")
a(f"v_lshlrev_b32 {v(vOFF+1)}, 14, {T(6)}")
a(f"v_lshl_add_u32 {v(vOFF+1)}, {T(7)}, 4, {v(vOFF+1)}")
a(f"v_lshl_add_u32 {T(8)}, {T(6)}, 1, {T(7)}")
a("s_movk_i32 s55, 3584")
a(f"v_mul_lo_u32 {v(vOFF+2)}, {T(8)}, s55")
a(f"v_mov_b32 {v(vOFF+3)}, s2")
a(f"v_lshlrev_b32 {v(vOFF+3)}, 2, {v(vOFF+3)}")
a("s_waitcnt lgkmcnt(0)")
a("s_lshl_b32 s49, s2, 13")
add64(30, 24, "s49")
a(f"global_store_dwordx4 {T(1)}, {vr(2+2,4)}, s[30:31] sc1")
a(f"global_load_dwordx4 {vr(vX,4)}, {v(vOFF+0)}, s[4:5]")
a(f"global_load_dword {vXF}, {v(vOFF+3)}, s[4:5]")
a("s_lshl_b32 s49, s26, 19")
a("s_lshl_b32 s55, s27, 10")
a("s_add_u32 s49, s49, s55")
a("s_lshl_b32 s55, s28, 5")
a("s_add_u32 s49, s49, s55")
add64(32, 10, "s49")
add64(34, 32, 8192)
a(f"global_load_dwordx4 {vr(vWQ,4)}, {v(vOFF+1)}, s[32:33]")
a(f"global_load_dwordx4 {vr(vWQ+4,4)}, {v(vOFF+1)}, s[34:35]")
a("s_mul_i32 s49, s26, 229376")
a("s_lshl_b32 s55, s29, 4")
a("s_add_u32 s49, s49, s55")
add64(44, 16, "s49")
a(f"global_load_dwordx4 {vr(vW1,4)}, {v(vOFF+2)}, s[44:45]")
a("s_lshl_b32 s49, s27, 24")
a("s_add_u32 s49, s49, 0xf00000")
a("s_lshl_b32 s55, s28, 15")
a("s_add_u32 s49, s49, s55")
a("s_lshl_b32 s55, s26, 12")
a("s_add_u32 s49, s49, s55")
add64(36, 6, "s49")
add64(38, 8, "s49")
a("s_lshl_b32 s49, s27, 2")
a("s_lshr_b32 s55, s28, 3")
a("s_add_u32 s49, s49, s55")
a("s_lshl_b32 s49, s49, 7")
a("s_and_b32 s55, s28, 7")
a("s_lshl_b32 s55, s55, 4")
a("s_add_u32 s49, s49, s55")
a("s_lshl_b32 s55, s26, 1")
a("s_add_u32 s49, s49, s55")
a("s_lshl_b32 s49, s49, 10")
add64(40, 12, "s49")
a("s_lshl_b32 s49, s29, 3")
a("s_add_u32 s49, s49, s26")
a("s_lshl_b32 s49, s49, 10")
add64(42, 18, "s49")
a("s_lshl_b32 s49, s27, 13")
add64(56, 24, "s49")
a(f"v_and_b32 {T(8)}, 15, {vL}")
a(f"v_lshrrev_b32 {T(9)}, 4, {vL}")
a(f"v_lshlrev_b32 {v(vOFF+4)}, 8, {T(8)}")
a(f"v_lshl_add_u32 {v(vOFF+4)}, {T(9)}, 4, {v(vOFF+4)}")
a(f"v_lshlrev_b32 {v(vOFF+5)}, 2, {vL}")
a(f"v_lshrrev_b32 {T(10)}, 1, {T(9)}")
a(f"v_lshl_add_u32 {T(10)}, {T(8)}, 3, {T(10)}")
a(f"v_lshlrev_b32 {T(10)}, 16, {T(10)}")
a(f"v_and_b32 {T(11)}, 1, {T(9)}")
a(f"v_lshl_add_u32 {T(10)}, {T(11)}, 4, {T(10)}")
a(f"v_add_u32 {v(vOFF+6)}, {R_Q}, {T(10)}")
for i in range(1, 4):
    a(f"v_add_u32 {v(vOFF+6+i)}, {131072*i}, {v(vOFF+6)}")
a(f"v_lshlrev_b32 {T(10)}, 16, {T(6)}")
a("s_lshr_b32 s49, s28, 3")
a("s_lshl_b32 s55, s49, 3")
a(f"s_add_u32 s55, s55, {R_ML}")
a(f"v_add_u32 {v(vOFF+10)}, s55, {T(10)}")
a("s_lshl_b32 s49, s49, 7")
a("s_and_b32 s55, s28, 7")
a("s_lshl_b32 s55, s55, 4")
a("s_add_u32 s49, s49, s55")
a("s_lshl_b32 s55, s26, 1")
a("s_add_u32 s49, s49, s55")
a("s_lshl_b32 s49, s49, 2")
a(f"s_add_u32 s49, s49, {R_O}")
a(f"v_add_u32 {v(vOFF+11)}, s49, {T(10)}")
for i in range(16):
    a(f"v_mov_b32 {v(vQ+i)}, 0")

a("s_waitcnt vmcnt(5)")
a("s_barrier")
a("s_cmp_lg_u32 s26, 0")
a("s_cbranch_scc1 L_noflag")
exec_set(1, 0)
a(f"v_mov_b32 {T(0)}, s2")
a(f"v_mov_b32 {T(1)}, 1")
a(f"global_store_byte {T(0)}, {T(1)}, s[22:23] sc1")
exec_all()
a.label("L_noflag")

a("s_waitcnt vmcnt(4)")
stamp()
for i in range(4):
    a(f"v_lshlrev_b32 {T(2*i)}, 16, {v(vX+i)}")
    a(f"v_and_b32 {T(2*i+1)}, 0xffff0000, {v(vX+i)}")
a(f"v_add_f32 {T(8)}, {T(0)}, {T(1)}")
a(f"v_add_f32 {T(9)}, {T(2)}, {T(3)}")
a(f"v_add_f32 {T(10)}, {T(4)}, {T(5)}")
a(f"v_add_f32 {T(11)}, {T(6)}, {T(7)}")
a(f"v_add_f32 {T(8)}, {T(8)}, {T(9)}")
a(f"v_add_f32 {T(10)}, {T(10)}, {T(11)}")
a(f"v_add_f32 {T(8)}, {T(8)}, {T(10)}")
red64("v_add_f32", [T(8)], [T(9)])
a(f"v_mul_f32 {T(8)}, 0x3b000000, {T(8)}")
a(f"v_sub_f32 {T(9)}, {T(0)}, {T(8)}")
a(f"v_mul_f32 {T(10)}, {T(9)}, {T(9)}")
for i in range(1, 8):
    a(f"v_sub_f32 {T(9)}, {T(i)}, {T(8)}")
    a(f"v_fmac_f32 {T(10)}, {T(9)}, {T(9)}")
red64("v_add_f32", [T(10)], [T(9)])
a(f"v_mul_f32 {T(10)}, 0x3b000000, {T(10)}")
bf16r(T(8), T(8), T(9))
bf16r(T(10), T(10), T(9))
a(f"v_add_f32 {T(10)}, 0x3727c5ac, {T(10)}")
bf16r(T(10), T(10), T(9))
a(f"v_sqrt_f32 {T(10)}, {T(10)}")
bf16r(T(10), T(10), T(9))
a(f"v_rcp_f32 {T(11)}, {T(10)}")
a(f"v_fma_f32 {T(9)}, -{T(10)}, {T(11)}, 1.0")
a(f"v_fma_f32 {T(11)}, {T(9)}, {T(11)}, {T(11)}")
for i in range(8):
    a(f"v_sub_f32 {T(i)}, {T(i)}, {T(8)}")
for i in range(4):
    a(f"v_cvt_pk_bf16_f32 {T(12+i)}, {T(2*i)}, {T(2*i+1)}")
for i in range(4):
    a(f"v_lshlrev_b32 {T(2*i)}, 16, {T(12+i)}")
    a(f"v_and_b32 {T(2*i+1)}, 0xffff0000, {T(12+i)}")
for i in range(8):
    a(f"v_mul_f32 {T(i)}, {T(i)}, {T(11)}")
for i in range(4):
    a(f"v_cvt_pk_bf16_f32 {T(12+i)}, {T(2*i)}, {T(2*i+1)}")
a(f"ds_write_b128 {v(vOFF+0)}, {vr(14,4)} offset:{L_XN}")
a(f"v_and_b32 {T(0)}, 31, {vL}")
a(f"v_lshlrev_b32 {T(0)}, 2, {T(0)}")
a("s_lshl_b32 s49, s26, 7")
a(f"v_add_u32 {T(0)}, s49, {T(0)}")
a("s_waitcnt lgkmcnt(0)")
a(f"ds_read_b32 {vXP}, {T(0)} offset:{L_XN}")

a("s_cmp_lg_u32 s26, 0")
a("s_cbranch_scc1 L_nofc")
a(f"global_load_dword {v(vP)}, {v(vOFF+5)}, s[22:23] sc1")
a.label("L_nofc")
for i in range(4):
    a(f"global_load_dwordx4 {vr(vK+4*i,4)}, {v(vOFF+4)}, s[36:37] offset:{64*i}")

a("s_waitcnt vmcnt(4) lgkmcnt(0)")
stamp()
QA = [v(vA+i) for i in range(8)]
HA = [v(vA+8+i) for i in range(4)]
a(f"v_permlane32_swap_b32 {v(vW1+0)}, {v(vW1+2)}")
a(f"v_permlane32_swap_b32 {v(vW1+1)}, {v(vW1+3)}")
for c in range(4):
    a(f"v_perm_b32 {T(2*c)}, {v(vWQ+4+c)}, {v(vWQ+c)}, {SEL_LO}")
    a(f"v_perm_b32 {T(2*c+1)}, {v(vWQ+4+c)}, {v(vWQ+c)}, {SEL_HI}")
for c in range(2):
    a(f"v_perm_b32 {T(8+2*c)}, {v(vW1+2+c)}, {v(vW1+c)}, {SEL_LO}")
    a(f"v_perm_b32 {T(8+2*c+1)}, {v(vW1+2+c)}, {v(vW1+c)}, {SEL_HI}")
for i in range(8):
    a(f"v_dot2_f32_bf16 {QA[i]}, {T(i)}, {vXP}, 0")
for i in range(4):
    a(f"v_dot2_f32_bf16 {HA[i]}, {T(8+i)}, {vXP}, 0")
red32("v_add_f32", QA + HA, [T(i) for i in range(12)])
a(f"v_lshrrev_b32 {T(0)}, 5, {vL}")
a(f"v_lshlrev_b32 {T(1)}, 5, {T(0)}")
a(f"v_lshlrev_b32 {T(2)}, 4, {T(0)}")
a("s_mul_i32 s49, s26, 96")
a(f"v_add_u32 {T(1)}, s49, {T(1)}")
a(f"v_add_u32 {T(2)}, s49, {T(2)}")
exec_set(1, 1)
a(f"ds_write_b128 {T(1)}, {vr(vA,4)} offset:{L_PART}")
a(f"ds_write_b128 {T(1)}, {vr(vA+4,4)} offset:{L_PART+16}")
a(f"ds_write_b128 {T(2)}, {vr(vA+8,4)} offset:{L_PART+64}")
exec_all()
a("s_cmp_lg_u32 s26, 0")
a("s_cbranch_scc1 L_nofr")
a(f"v_cmp_ne_u32 vcc, 0x01010101, {v(vP)}")
a("s_cmp_eq_u64 vcc, 0")
a("s_cselect_b32 s49, 1, 0")
a(f"v_mov_b32 {T(0)}, s49")
a(f"v_mov_b32 {T(1)}, 0")
exec_set(1, 0)
a(f"ds_write_b32 {T(1)}, {T(0)} offset:{L_FLAG}")
exec_all()
a.label("L_nofr")
a("s_waitcnt lgkmcnt(0)")
a("s_barrier")
a(f"v_mov_b32 {T(1)}, 0")
a(f"ds_read_b32 {T(0)}, {T(1)} offset:{L_FLAG}")
a("s_waitcnt lgkmcnt(0)")
a(f"v_readfirstlane_b32 s49, {T(0)}")
a("s_cmp_eq_u32 s49, 1")
a("s_cbranch_scc1 L_flagok")
a("s_cmp_lg_u32 s26, 0")
a("s_cbranch_scc1 L_fwait")
a.label("L_floop")
a(f"global_load_dword {v(vP)}, {v(vOFF+5)}, s[22:23] sc1")
a("s_add_u32 s52, s52, 1")
a(f"s_cmp_gt_u32 s52, {SPIN_CAP}")
a("s_cbranch_scc1 L_end")
a("s_waitcnt vmcnt(0)")
a(f"v_cmp_ne_u32 vcc, 0x01010101, {v(vP)}")
a("s_cmp_eq_u64 vcc, 0")
a("s_cbranch_scc0 L_floop")
a.label("L_fwait")
a("s_barrier")
a.label("L_flagok")

a("s_cmp_lg_u32 s26, 0")
a("s_cbranch_scc1 L_noq")
for w in range(8):
    a(f"ds_read_b32 {T(w)}, {v(vOFF+5)} offset:{L_PART+96*w}")
a("s_waitcnt lgkmcnt(0)")
a(f"v_add_f32 {T(0)}, {T(0)}, {T(1)}")
a(f"v_add_f32 {T(2)}, {T(2)}, {T(3)}")
a(f"v_add_f32 {T(4)}, {T(4)}, {T(5)}")
a(f"v_add_f32 {T(6)}, {T(6)}, {T(7)}")
a(f"v_add_f32 {T(0)}, {T(0)}, {T(2)}")
a(f"v_add_f32 {T(4)}, {T(4)}, {T(6)}")
a(f"v_add_f32 {T(0)}, {T(0)}, {T(4)}")
a(f"v_mov_b32_dpp {T(1)}, {T(0)} quad_perm:[1,0,3,2] {DPP}")
a(f"v_cvt_pk_bf16_f32 {T(2)}, {T(0)}, {T(1)}")
canon(T(2), vNANP)
a(f"v_lshlrev_b32 {T(3)}, 1, {vL}")
exec_set(0x5555, 0)
a(f"global_store_dword {T(3)}, {T(2)}, s[30:31] offset:{R_Q} sc1") if R_Q < 4096 else None
if R_Q >= 4096:
    exec_all()
    a(f"v_add_u32 {T(3)}, {R_Q}, {T(3)}")
    exec_set(0x5555, 0)
    a(f"global_store_dword {T(3)}, {T(2)}, s[30:31] sc1")
exec_all()
bf16r(T(0), T(0), T(1))
a(f"v_max_f32 {T(0)}, 0, {T(0)}")
a(f"v_and_b32 {T(0)}, s48, {T(0)}")
exec_set(0xff0000, 0)
a(f"ds_write_b32 {v(vOFF+5)}, {T(0)} offset:{L_H-64}")
exec_all()
a.label("L_noq")
stamp()

for k in range(N1):
    a(f"global_load_dword {v(vV+k)}, {v(vOFF+5)}, s[38:39] offset:{256*k}")
a(f"s_waitcnt vmcnt({N1})")
stamp()
exec_set(0x000f000f, 0x000f000f)
for i in range(4):
    a(f"global_load_dwordx4 {vr(vQ+4*i,4)}, {v(vOFF+6+i)}, s[56:57] sc1")
exec_all()
for k in range(N1, 16):
    a(f"global_load_dword {v(vV+k)}, {v(vOFF+5)}, s[38:39] offset:{256*k}")
a(f"s_waitcnt vmcnt({16-N1})")
def qcheck():
    a(f"v_max3_u32 {T(0)}, {v(vQ)}, {v(vQ+1)}, {v(vQ+2)}")
    for i in range(3, 15, 2):
        a(f"v_max3_u32 {T(0)}, {T(0)}, {v(vQ+i)}, {v(vQ+i+1)}")
    a(f"v_max_u32 {T(0)}, {T(0)}, {v(vQ+15)}")
    a("v_cmp_eq_u32 vcc, -1, " + T(0))
    a("s_cmp_eq_u64 vcc, 0")
qcheck()
a("s_cbranch_scc1 L_qok")
a.label("L_qloop")
exec_set(0x000f000f, 0x000f000f)
for i in range(4):
    a(f"global_load_dwordx4 {vr(vQ+4*i,4)}, {v(vOFF+6+i)}, s[56:57] sc1")
exec_all()
a("s_add_u32 s52, s52, 1")
a(f"s_cmp_gt_u32 s52, {SPIN_CAP}")
a("s_cbranch_scc1 L_end")
a("s_waitcnt vmcnt(0)")
qcheck()
a("s_cbranch_scc0 L_qloop")
a.label("L_qok")
stamp()
a(f"global_load_dwordx4 {vr(vWO,4)}, {v(vOFF+0)}, s[40:41]")
a(f"global_load_dwordx4 {vr(vWO+4,4)}, {v(vOFF+0)}, s[40:41] offset:1024")
a(f"global_load_dwordx4 {vr(vW2,4)}, {v(vOFF+0)}, s[42:43]")
for i in range(4):
    c = "0" if i == 0 else vr(vD, 4)
    a(f"v_mfma_f32_16x16x32_bf16 {vr(vD,4)}, {vr(vK+4*i,4)}, {vr(vQ+4*i,4)}, {c}")
def round4():
    a(f"v_cvt_pk_bf16_f32 {T(0)}, {v(vD)}, {v(vD+1)}")
    a(f"v_cvt_pk_bf16_f32 {T(1)}, {v(vD+2)}, {v(vD+3)}")
    a(f"v_lshlrev_b32 {v(vD)}, 16, {T(0)}")
    a(f"v_and_b32 {v(vD+1)}, 0xffff0000, {T(0)}")
    a(f"v_lshlrev_b32 {v(vD+2)}, 16, {T(1)}")
    a(f"v_and_b32 {v(vD+3)}, 0xffff0000, {T(1)}")
round4()
for r in range(4):
    a(f"v_mul_f32 {v(vD+r)}, s54, {v(vD+r)}")
round4()
a(f"v_max3_f32 {T(2)}, {v(vD)}, {v(vD+1)}, {v(vD+2)}")
a(f"v_max_f32 {T(2)}, {T(2)}, {v(vD+3)}")
swapred("v_max_f32", [T(2)], [T(4)], 16)
swapred("v_max_f32", [T(2)], [T(4)], 32)
for r in range(4):
    a(f"v_sub_f32 {v(vD+r)}, {v(vD+r)}, {T(2)}")
for r in range(4):
    a(f"v_mul_f32 {v(vD+r)}, s53, {v(vD+r)}")
for r in range(4):
    a(f"v_exp_f32 {v(vD+r)}, {v(vD+r)}")
a(f"v_add_f32 {T(3)}, {v(vD)}, {v(vD+1)}")
a(f"v_add_f32 {T(4)}, {v(vD+2)}, {v(vD+3)}")
a(f"v_cvt_pk_bf16_f32 {T(6)}, {v(vD)}, {v(vD+1)}")
a(f"v_cvt_pk_bf16_f32 {T(7)}, {v(vD+2)}, {v(vD+3)}")
a(f"v_add_f32 {T(3)}, {T(3)}, {T(4)}")
swapred("v_add_f32", [T(3)], [T(4)], 16)
swapred("v_add_f32", [T(3)], [T(4)], 32)
for h in range(4):
    for kq in range(4):
        a(f"v_readlane_b32 s{sP0+h*8+2*kq}, {T(6)}, {kq*16+h}")
        a(f"v_readlane_b32 s{sP0+h*8+2*kq+1}, {T(7)}, {kq*16+h}")
a(f"v_lshlrev_b32 {T(8)}, 3, {vL}")
a("s_lshl_b32 s49, s26, 5")
a(f"v_add_u32 {T(8)}, s49, {T(8)}")
exec_set(0xf, 0)
a(f"ds_write_b64 {T(8)}, {vr(4,2)} offset:{L_ML}")
exec_all()
OA = [[v(vA+2*h), v(vA+2*h+1)] for h in range(4)]
def pv(t):
    a(f"v_perm_b32 {T(10)}, {v(vV+2*t+1)}, {v(vV+2*t)}, {SEL_LO}")
    a(f"v_perm_b32 {T(11)}, {v(vV+2*t+1)}, {v(vV+2*t)}, {SEL_HI}")
    for h in range(4):
        if t == 0:
            a(f"v_dot2_f32_bf16 {OA[h][0]}, {T(10)}, s{sP0+h*8+t}, 0")
            a(f"v_dot2_f32_bf16 {OA[h][1]}, {T(11)}, s{sP0+h*8+t}, 0")
        else:
            a(f"v_dot2_f32_bf16 {OA[h][0]}, {T(10)}, s{sP0+h*8+t}, {OA[h][0]}")
            a(f"v_dot2_f32_bf16 {OA[h][1]}, {T(11)}, s{sP0+h*8+t}, {OA[h][1]}")
for t in range(N1 // 2):
    pv(t)
a("s_waitcnt vmcnt(3)")
stamp()
for t in range(N1 // 2, 8):
    pv(t)
a(f"v_lshlrev_b32 {T(8)}, 3, {vL}")
a("s_lshl_b32 s49, s26, 11")
a(f"v_add_u32 {T(8)}, s49, {T(8)}")
for h in range(4):
    a(f"ds_write_b64 {T(8)}, {vr(vA+2*h,2)} offset:{L_O+512*h}")
a("s_waitcnt lgkmcnt(0)")
a("s_barrier")
a("s_lshr_b32 s49, s26, 1")
a("s_lshl_b32 s55, s49, 3")
a(f"v_mov_b32 {T(16)}, s55")
a(f"v_and_b32 {T(17)}, 127, {vTID}")
a(f"v_lshlrev_b32 {T(17)}, 2, {T(17)}")
a("s_lshl_b32 s55, s49, 9")
a(f"v_add_u32 {T(17)}, s55, {T(17)}")
for w in range(8):
    a(f"ds_read_b64 {vr(vK+2*w,2)}, {T(16)} offset:{L_ML+32*w}")
for w in range(8):
    a(f"ds_read_b32 {v(vV+w)}, {T(17)} offset:{L_O+2048*w}")
a("s_waitcnt lgkmcnt(0)")
a(f"v_max3_f32 {T(2)}, {v(vK)}, {v(vK+2)}, {v(vK+4)}")
a(f"v_max3_f32 {T(2)}, {T(2)}, {v(vK+6)}, {v(vK+8)}")
a(f"v_max3_f32 {T(2)}, {T(2)}, {v(vK+10)}, {v(vK+12)}")
a(f"v_max_f32 {T(2)}, {T(2)}, {v(vK+14)}")
for w in range(8):
    a(f"v_sub_f32 {v(vK+2*w)}, {v(vK+2*w)}, {T(2)}")
for w in range(8):
    a(f"v_mul_f32 {v(vK+2*w)}, s53, {v(vK+2*w)}")
for w in range(8):
    a(f"v_exp_f32 {v(vK+2*w)}, {v(vK+2*w)}")
a(f"v_mul_f32 {T(3)}, {v(vK)}, {v(vK+1)}")
a(f"v_mul_f32 {T(4)}, {v(vK)}, {v(vV)}")
for w in range(1, 8):
    a(f"v_fmac_f32 {T(3)}, {v(vK+2*w)}, {v(vK+2*w+1)}")
    a(f"v_fmac_f32 {T(4)}, {v(vK+2*w)}, {v(vV+w)}")
canon(T(4), vNANF)
canon(T(2), vNANF)
canon(T(3), vNANF)
a(f"v_lshlrev_b32 {T(5)}, 2, {vTID}")
a(f"v_add_u32 {T(5)}, {R_O}, {T(5)}")
a(f"global_store_dword {T(5)}, {T(4)}, s[30:31] sc1")
a(f"v_add_u32 {T(16)}, {R_ML}, {T(16)}")
a(f"v_and_b32 {T(6)}, 127, {vTID}")
a(f"v_cmp_eq_u32 vcc, 0, {T(6)}")
a("s_and_saveexec_b64 s[50:51], vcc")
a("s_cbranch_execz L_noml")
a(f"global_store_dwordx2 {T(16)}, {vr(4,2)}, s[30:31] sc1")
a.label("L_noml")
exec_all()
stamp()
PM, PO = vP, vP + 2
a.label("L_oloop")
a(f"global_load_dwordx2 {vr(PM,2)}, {v(vOFF+10)}, s[56:57] sc1")
a(f"global_load_dwordx2 {vr(PO,2)}, {v(vOFF+11)}, s[56:57] sc1")
a("s_add_u32 s52, s52, 1")
a(f"s_cmp_gt_u32 s52, {SPIN_CAP}")
a("s_cbranch_scc1 L_end")
a("s_waitcnt vmcnt(0)")
a(f"v_max3_u32 {T(0)}, {v(PM)}, {v(PM+1)}, {v(PO)}")
a(f"v_max_u32 {T(0)}, {T(0)}, {v(PO+1)}")
a(f"v_cmp_eq_u32 vcc, -1, {T(0)}")
a("s_cmp_eq_u64 vcc, 0")
a("s_cbranch_scc0 L_oloop")
stamp()
a(f"v_mov_b32 {T(0)}, {v(PM)}")
red32("v_max_f32", [T(0)], [T(1)])
a(f"v_sub_f32 {T(0)}, {v(PM)}, {T(0)}")
a(f"v_mul_f32 {T(0)}, s53, {T(0)}")
a(f"v_exp_f32 {T(0)}, {T(0)}")
a(f"v_mul_f32 {T(1)}, {T(0)}, {v(PM+1)}")
a(f"v_mul_f32 {T(2)}, {T(0)}, {v(PO)}")
a(f"v_mul_f32 {T(3)}, {T(0)}, {v(PO+1)}")
red32("v_add_f32", [T(1), T(2), T(3)], [T(4), T(5), T(6)])
a(f"v_rcp_f32 {T(4)}, {T(1)}")
a(f"v_fma_f32 {T(5)}, -{T(1)}, {T(4)}, 1.0")
a(f"v_fma_f32 {T(4)}, {T(5)}, {T(4)}, {T(4)}")
a(f"v_mul_f32 {T(2)}, {T(2)}, {T(4)}")
a(f"v_mul_f32 {T(3)}, {T(3)}, {T(4)}")
a(f"v_cvt_pk_bf16_f32 {T(0)}, {T(2)}, {T(3)}")
a("s_lshl_b32 s49, s26, 2")
a(f"v_mov_b32 {T(1)}, s49")
a(f"ds_read_b32 {T(1)}, {T(1)} offset:{L_H}")
for c in range(4):
    a(f"v_perm_b32 {T(2+2*c)}, {v(vWO+4+c)}, {v(vWO+c)}, {SEL_LO}")
    a(f"v_perm_b32 {T(3+2*c)}, {v(vWO+4+c)}, {v(vWO+c)}, {SEL_HI}")
for i in range(8):
    a(f"v_dot2_f32_bf16 {v(vA+i)}, {T(2+i)}, {T(0)}, 0")
a("s_waitcnt lgkmcnt(0)")
for c in range(4):
    a(f"v_lshlrev_b32 {v(vA+8+2*c)}, 16, {v(vW2+c)}")
    a(f"v_and_b32 {v(vA+9+2*c)}, 0xffff0000, {v(vW2+c)}")
for i in range(8):
    a(f"v_mul_f32 {v(vA+8+i)}, {v(vA+8+i)}, {T(1)}")
a(f"v_lshlrev_b32 {T(10)}, 5, {vL}")
a("s_lshl_b32 s49, s26, 12")
a(f"v_add_u32 {T(10)}, s49, {T(10)}")
a(f"ds_write_b128 {T(10)}, {vr(vA,4)} offset:{L_AB}")
a(f"ds_write_b128 {T(10)}, {vr(vA+4,4)} offset:{L_AB+16}")
a(f"ds_write_b128 {T(10)}, {vr(vA+8,4)} offset:{L_AB+2048}")
a(f"ds_write_b128 {T(10)}, {vr(vA+12,4)} offset:{L_AB+2048+16}")
a("s_waitcnt lgkmcnt(0)")
a("s_barrier")
a(f"v_lshlrev_b32 {T(16)}, 2, {vTID}")
for w in range(8):
    a(f"ds_read_b32 {v(vK+w)}, {T(16)} offset:{L_AB+4096*w}")
    a(f"ds_read_b32 {v(vK+8+w)}, {T(16)} offset:{L_AB+4096*w+2048}")
a("s_waitcnt lgkmcnt(0)")
def sum8(base, dst):
    a(f"v_add_f32 {v(base)}, {v(base)}, {v(base+1)}")
    a(f"v_add_f32 {v(base+2)}, {v(base+2)}, {v(base+3)}")
    a(f"v_add_f32 {v(base+4)}, {v(base+4)}, {v(base+5)}")
    a(f"v_add_f32 {v(base+6)}, {v(base+6)}, {v(base+7)}")
    a(f"v_add_f32 {v(base)}, {v(base)}, {v(base+2)}")
    a(f"v_add_f32 {v(base+4)}, {v(base+4)}, {v(base+6)}")
    a(f"v_add_f32 {dst}, {v(base)}, {v(base+4)}")
sum8(vK, T(2))
sum8(vK+8, T(4))
a(f"v_mov_b32_dpp {T(3)}, {T(2)} quad_perm:[1,0,3,2] {DPP}")
a(f"v_mov_b32_dpp {T(5)}, {T(4)} quad_perm:[1,0,3,2] {DPP}")
for i in range(2, 6):
    canon(T(i), vNANF)
a(f"v_lshrrev_b32 {T(6)}, 1, {vTID}")
a(f"v_lshlrev_b32 {T(6)}, 13, {T(6)}")
a("s_lshl_b32 s49, s2, 4")
a(f"v_add_u32 {T(6)}, s49, {T(6)}")
exec_set(0x55555555, 0x55555555)
a(f"global_store_dwordx4 {T(6)}, {vr(4,4)}, s[24:25] sc1")
exec_all()
a("s_cmp_lg_u32 s26, 0")
a("s_cbranch_scc1 L_end")
a.label("L_floop2")
for k in range(4):
    a(f"global_load_dwordx4 {vr(vP+4*k,4)}, {v(vOFF+0)}, s[30:31] offset:{1024*k} sc1")
a("s_add_u32 s52, s52, 1")
a(f"s_cmp_gt_u32 s52, {SPIN_CAP}")
a("s_cbranch_scc1 L_end")
a("s_waitcnt vmcnt(0)")
a(f"v_max3_u32 {T(0)}, {v(vP)}, {v(vP+1)}, {v(vP+2)}")
for i in range(3, 15, 2):
    a(f"v_max3_u32 {T(0)}, {T(0)}, {v(vP+i)}, {v(vP+i+1)}")
a(f"v_max_u32 {T(0)}, {T(0)}, {v(vP+15)}")
a(f"v_cmp_eq_u32 vcc, -1, {T(0)}")
a("s_cmp_eq_u64 vcc, 0")
a("s_cbranch_scc0 L_floop2")
stamp()
for c in range(4):
    a(f"v_add_f32 {v(vP+c)}, {v(vP+c)}, {v(vP+4+c)}")
    a(f"v_add_f32 {v(vP+8+c)}, {v(vP+8+c)}, {v(vP+12+c)}")
for c in range(4):
    a(f"v_add_f32 {v(vP+c)}, {v(vP+c)}, {v(vP+8+c)}")
red64("v_add_f32", [v(vP+c) for c in range(4)], [T(c) for c in range(4)])
a(f"v_cvt_pk_bf16_f32 {T(0)}, {v(vP)}, {v(vP+1)}")
a(f"v_cvt_pk_bf16_f32 {T(1)}, {v(vP+2)}, {v(vP+3)}")
a(f"v_lshlrev_b32 {T(2)}, 16, {T(0)}")
a(f"v_and_b32 {T(3)}, 0xffff0000, {T(0)}")
a(f"v_lshlrev_b32 {T(4)}, 16, {vXF}")
a(f"v_and_b32 {T(5)}, 0xffff0000, {vXF}")
a(f"v_add_f32 {T(2)}, {T(2)}, {T(4)}")
a(f"v_add_f32 {T(3)}, {T(3)}, {T(5)}")
a(f"v_cvt_pk_bf16_f32 {T(0)}, {T(2)}, {T(3)}")
a(f"v_lshlrev_b32 {T(2)}, 16, {T(0)}")
a(f"v_and_b32 {T(3)}, 0xffff0000, {T(0)}")
a(f"v_lshlrev_b32 {T(4)}, 16, {T(1)}")
a(f"v_and_b32 {T(5)}, 0xffff0000, {T(1)}")
a(f"v_add_f32 {T(2)}, {T(2)}, {T(4)}")
a(f"v_add_f32 {T(3)}, {T(3)}, {T(5)}")
a(f"v_cvt_pk_bf16_f32 {T(0)}, {T(2)}, {T(3)}")
exec_set(1, 0)
a(f"global_store_dword {v(vOFF+3)}, {T(0)}, s[20:21]")
exec_all()
if STAMPS:
    a("s_memtime s[100:101]")
    a("s_waitcnt lgkmcnt(0)")
    a("s_lshl_b32 s49, s2, 6")
    a("s_add_u32 s49, s49, 0x400000")
    a(f"v_mov_b32 {T(10)}, s49")
    exec_set(1, 0)
    for i in range(10):
        a(f"v_mov_b32 {T(0)}, s{58+i}")
        a(f"global_store_dword {T(10)}, {T(0)}, s[24:25] offset:{4*i}")
        a("s_nop 1")
    a(f"v_mov_b32 {T(0)}, s100")
    a(f"global_store_dword {T(10)}, {T(0)}, s[24:25] offset:40")
    a(f"v_mov_b32 {T(1)}, s52")
    a(f"global_store_dword {T(10)}, {T(1)}, s[24:25] offset:44")
    exec_all()
a.label("L_end")
a("s_endpgm")
a.raw(f""".section .rodata,"a"
.p2align 6
.amdhsa_kernel {NAME}_kernel
  .amdhsa_next_free_vgpr {NVGPR}
  .amdhsa_next_free_sgpr 102
  .amdhsa_accum_offset {NVGPR}
  .amdhsa_group_segment_fixed_size 0
  .amdhsa_kernarg_size 88
  .amdhsa_user_sgpr_count 2
  .amdhsa_user_sgpr_kernarg_segment_ptr 1
  .amdhsa_system_sgpr_workgroup_id_x 1
  .amdhsa_float_denorm_mode_32 3
  .amdhsa_float_denorm_mode_16_64 3
.end_amdhsa_kernel""")

out = sys.argv[1]
open(out, "w").write(a.text())
```

```python
import sys
from asmlib import Asm

NAME = "parallel_sum__sliding_block_cached__dense_activation_relu__decode"
STAMPS = "--stamps" in sys.argv
N1 = 8
SPIN_CAP = 400000

L_XN = 0
L_QP = 1024
L_QB = 3072
L_HP = 3328
L_ML = 3584
L_O = 4096
L_AB = 20480
L_QI = 53248
L_OI = 57344
LDS_BYTES = 90112

R_Q = 0
R_O = 8192
R_FA = 16384
R_FB = 24576
R_B = 32768
SH = 16
CS = SH + 3
STAMP_OFF = 20 << 20
EPOCH = 24 << 20

a = Asm()

vTID, vL = "v0", "v1"
def T(i): return f"v{2+i}"
vX = 20
vST = "v24"
vXP = "v25"
vWQ = 28
vW1 = 36
vK = 40
vV = 56
vWO = 72
vW2 = 80
vQ = 84
vD = 100
vA = 104
vOFF = 120
vP = 40
vXH = "v26"
vE = "v27"
vG = 136
NVGPR = 140
def v(i): return f"v{i}"
def vr(i, n): return f"v[{i}:{i+n-1}]"

SEL_LO, SEL_HI = "s46", "s47"
sP0 = 68
nstamp = [0]
def stamp():
    if not STAMPS: return
    i = nstamp[0]; nstamp[0] += 1
    a("s_memrealtime s[100:101]")
    a("s_waitcnt lgkmcnt(0)")
    a(f"v_writelane_b32 {vST}, s100, {i}")

DPP = "row_mask:0xf bank_mask:0xf"
def dppstep(op, regs, pat):
    for r in regs:
        a(f"{op}_dpp {r}, {r}, {r} {pat} {DPP}")
def red16(op, regs):
    for pat in ("quad_perm:[1,0,3,2]", "quad_perm:[2,3,0,1]", "row_half_mirror", "row_mirror"):
        dppstep(op, regs, pat)
def swapred(op, regs, tmps, which):
    for r, t in zip(regs, tmps):
        a(f"v_mov_b32 {t}, {r}")
    for r, t in zip(regs, tmps):
        a(f"v_permlane{which}_swap_b32 {r}, {t}")
    for r, t in zip(regs, tmps):
        a(f"{op} {r}, {r}, {t}")
def red32(op, regs, tmps):
    red16(op, regs); swapred(op, regs, tmps, 16)
def red64(op, regs, tmps):
    red32(op, regs, tmps); swapred(op, regs, tmps, 32)
def bf16r(dst, src, tmp):
    a(f"v_cvt_pk_bf16_f32 {tmp}, {src}, {src}")
    a(f"v_lshlrev_b32 {dst}, 16, {tmp}")
def exec_set(lo, hi):
    a(f"s_mov_b32 exec_lo, {lo:#x}")
    a(f"s_mov_b32 exec_hi, {hi:#x}")
def exec_all():
    a("s_mov_b64 exec, -1")
def add64(dst, base, off):
    a(f"s_add_u32 s{dst}, s{base}, {off}")
    a(f"s_addc_u32 s{dst+1}, s{base+1}, 0")
def sum8(regs, dst):
    r = regs
    a(f"v_add_f32 {r[0]}, {r[0]}, {r[1]}")
    a(f"v_add_f32 {r[2]}, {r[2]}, {r[3]}")
    a(f"v_add_f32 {r[4]}, {r[4]}, {r[5]}")
    a(f"v_add_f32 {r[6]}, {r[6]}, {r[7]}")
    a(f"v_add_f32 {r[0]}, {r[0]}, {r[2]}")
    a(f"v_add_f32 {r[4]}, {r[4]}, {r[6]}")
    a(f"v_add_f32 {dst}, {r[0]}, {r[4]}")
def inbox_loads(offreg, n, b=False):
    lo, hi = ("s[34:35]", "s[60:61]") if b else ("s[30:31]", "s[32:33]")
    for k in range(n):
        base = lo if k < 4 else hi
        a(f"global_load_dwordx4 {vr(vP+4*k,4)}, {offreg}, {base} offset:{1024*(k%4)} sc1")
def tagcheck(n):
    a(f"v_xor_b32 {T(0)}, s22, {v(vP+2)}")
    a(f"v_xor_b32 {T(1)}, s23, {v(vP+3)}")
    a(f"v_or_b32 {T(0)}, {T(0)}, {T(1)}")
    for k in range(1, n):
        a(f"v_xor_b32 {T(1)}, s22, {v(vP+4*k+2)}")
        a(f"v_xor_b32 {T(2)}, s23, {v(vP+4*k+3)}")
        a(f"v_or3_b32 {T(0)}, {T(0)}, {T(1)}, {T(2)}")
    a(f"v_cmp_ne_u32 vcc, 0, {T(0)}")
    a("s_cmp_eq_u64 vcc, 0")
def spin_guard():
    a("s_add_u32 s52, s52, 1")
    a(f"s_cmp_gt_u32 s52, {SPIN_CAP}")
    a("s_cbranch_scc1 L_end")
def poll_loop(name, offreg, n, first_issued=False, dual=True):
    if first_issued:
        tagcheck(n)
        a(f"s_cbranch_scc1 L_{name}_ok")
    a.label(f"L_{name}_loop")
    inbox_loads(offreg, n)
    spin_guard()
    a("s_waitcnt vmcnt(0)")
    tagcheck(n)
    if not dual:
        a(f"s_cbranch_scc0 L_{name}_loop")
    else:
        a(f"s_cbranch_scc1 L_{name}_ok")
        a("s_and_b32 s49, s52, 3")
        a("s_cmp_lg_u32 s49, 3")
        a(f"s_cbranch_scc1 L_{name}_loop")
        inbox_loads(offreg, n, b=True)
        a("s_waitcnt vmcnt(0)")
        tagcheck(n)
        a(f"s_cbranch_scc0 L_{name}_loop")
    a.label(f"L_{name}_ok")

a.raw(f"""; Kernarg layout: x, k_cache, v_cache, wq, wo, B_x, w1, w2, out, debug, ws (8-byte pointers)
; @launch grid=(256,1,1) block=(576,1,1) lds={LDS_BYTES}
.amdgcn_target "amdgcn-amd-amdhsa--gfx950"
.text
.globl {NAME}_kernel
.p2align 8
.type {NAME}_kernel,@function
{NAME}_kernel:""")

a("s_cmp_ge_u32 s2, 256")
a("s_cbranch_scc1 L_end")
a("s_load_dwordx16 s[4:19], s[0:1], 0")
a("s_load_dwordx4 s[20:23], s[0:1], 64")
a("s_load_dwordx2 s[24:25], s[0:1], 80")
stamp()
a(f"v_and_b32 {vL}, 63, {vTID}")
a(f"v_lshrrev_b32 {T(0)}, 6, {vTID}")
a(f"v_readfirstlane_b32 s26, {T(0)}")
a("s_and_b32 s27, s2, 7")
a("s_lshr_b32 s28, s2, 3")
a(f"v_lshlrev_b32 {v(vOFF+0)}, 4, {vL}")
a(f"v_lshrrev_b32 {T(6)}, 3, {vL}")
a(f"v_and_b32 {T(7)}, 7, {vL}")
a(f"v_lshlrev_b32 {v(vOFF+1)}, 14, {T(6)}")
a(f"v_lshl_add_u32 {v(vOFF+1)}, {T(7)}, 4, {v(vOFF+1)}")
a(f"v_mov_b32 {T(8)}, {EPOCH:#x}")
a(f"v_and_b32 {T(9)}, 15, {vL}")
a(f"v_lshrrev_b32 {T(10)}, 4, {vL}")
a(f"v_lshlrev_b32 {v(vOFF+3)}, {CS}, {T(10)}")
a(f"v_lshl_add_u32 {v(vOFF+3)}, {T(9)}, 4, {v(vOFF+3)}")
a("s_and_b32 s49, s28, 7")
a("s_lshr_b32 s49, s49, 1")
a("s_lshl_b32 s49, s49, 2")
a("s_lshr_b32 s55, s28, 3")
a("s_add_u32 s49, s49, s55")
a("s_lshl_b32 s49, s49, 9")
a("s_and_b32 s55, s28, 1")
a("s_lshl_b32 s55, s55, 8")
a("s_add_u32 s62, s49, s55")
a("s_lshr_b32 s49, s28, 3")
a("s_lshl_b32 s49, s49, 7")
a("s_lshl_b32 s55, s26, 4")
a("s_add_u32 s49, s49, s55")
a("s_lshl_b32 s49, s49, 13")
a("s_lshl_b32 s55, s27, 10")
a("s_add_u32 s49, s49, s55")
a("s_and_b32 s55, s28, 7")
a("s_lshl_b32 s55, s55, 7")
a("s_add_u32 s49, s49, s55")
a(f"s_lshl_b32 s55, s27, {SH}")
a("s_waitcnt lgkmcnt(0)")
add64(56, 24, "s55")
add64(64, 10, "s49")
add64(66, 64, 8192)
a(f"global_load_dword {vE}, {T(8)}, s[24:25]")
a("s_cmp_eq_u32 s26, 8")
a("s_cbranch_scc1 L_nold")
a(f"global_load_dwordx4 {vr(vX,4)}, {v(vOFF+0)}, s[4:5]")
a(f"global_load_dwordx4 {vr(vWQ,4)}, {v(vOFF+1)}, s[64:65] nt")
a(f"global_load_dwordx4 {vr(vWQ+4,4)}, {v(vOFF+1)}, s[66:67] nt")
a.label("L_nold")
a(f"v_lshlrev_b32 {v(vOFF+4)}, 8, {T(9)}")
a(f"v_lshl_add_u32 {v(vOFF+4)}, {T(10)}, 4, {v(vOFF+4)}")
a("s_lshl_b32 s50, s27, 24")
a("s_add_u32 s50, s50, 0xf00000")
a("s_lshl_b32 s55, s28, 15")
a("s_add_u32 s50, s50, s55")
a("s_lshl_b32 s55, s26, 12")
a("s_add_u32 s50, s50, s55")
add64(36, 6, "s50")
add64(38, 8, "s50")
a("s_cmp_eq_u32 s26, 8")
a("s_cbranch_scc1 L_nold2")
a(f"global_load_dwordx4 {vr(vK,4)}, {v(vOFF+4)}, s[36:37] nt")
a.label("L_nold2")
add64(58, 56, R_B)
a(f"s_mov_b32 {SEL_LO}, 0x05040100")
a(f"s_mov_b32 {SEL_HI}, 0x07060302")
a("s_mov_b32 s53, 0x3fb8aa3b")
a("s_mov_b32 s54, 0x3db504f3")
a("s_mov_b32 s52, 0")
a("s_mul_i32 s29, s27, 28")
a("s_add_u32 s29, s29, s28")
a("s_cmp_lt_u32 s28, 28")
a("s_cselect_b32 s29, s29, 0")
a("s_cselect_b32 s48, -1, 0")
a(f"s_lshl_b32 s49, s2, {SH}")
add64(30, 24, "s49")
add64(32, 30, 4096)
add64(34, 30, R_B)
add64(60, 30, R_B + 4096)
a("s_mul_i32 s49, s26, 229376")
a("s_lshl_b32 s55, s29, 4")
a("s_add_u32 s49, s49, s55")
add64(44, 16, "s49")
a(f"v_and_b32 {T(6)}, 31, {vL}")
a(f"v_lshrrev_b32 {T(7)}, 5, {vL}")
a(f"v_lshl_add_u32 {T(8)}, {T(6)}, 1, {T(7)}")
a("s_movk_i32 s55, 3584")
a(f"v_mul_lo_u32 {v(vOFF+2)}, {T(8)}, s55")
a("s_lshl_b32 s49, s27, 2")
a("s_lshr_b32 s55, s28, 3")
a("s_add_u32 s49, s49, s55")
a("s_lshl_b32 s49, s49, 7")
a("s_and_b32 s55, s28, 7")
a("s_lshl_b32 s55, s55, 4")
a("s_add_u32 s49, s49, s55")
a("s_lshl_b32 s55, s26, 1")
a("s_add_u32 s49, s49, s55")
a("s_lshl_b32 s49, s49, 10")
add64(40, 12, "s49")
a("s_lshl_b32 s49, s29, 3")
a("s_add_u32 s49, s49, s26")
a("s_lshl_b32 s49, s49, 10")
add64(42, 18, "s49")
a(f"v_lshlrev_b32 {v(vOFF+5)}, 2, {vL}")
a(f"v_lshlrev_b32 {v(vOFF+10)}, 7, {T(6)}")
a("s_lshl_b32 s49, s26, 3")
a(f"v_add_u32 {v(vOFF+11)}, s49, {v(vOFF+10)}")
a("s_lshl_b32 s49, s28, 3")
a("s_and_b32 s55, s28, 7")
a("s_add_u32 s49, s49, s55")
a(f"s_lshl_b32 s3, s49, {SH}")
a(f"v_min_u32 {T(11)}, 8, {T(9)}")
a(f"v_lshlrev_b32 {T(12)}, 8, {T(10)}")
a(f"v_lshl_add_u32 {T(12)}, {T(11)}, 4, {T(12)}")
a(f"v_add_u32 {v(vOFF+14)}, {R_O}, {T(12)}")
a(f"v_lshlrev_b32 {T(12)}, 7, {T(10)}")
a(f"v_lshl_add_u32 {v(vOFF+13)}, {T(11)}, 3, {T(12)}")
a(f"v_add_u32 {v(vOFF+15)}, {R_FA}, {v(vOFF+0)}")
a(f"v_lshlrev_b32 {v(vOFF+12)}, 3, {vL}")

a("s_cmp_eq_u32 s26, 8")
a("s_cbranch_scc1 L_comm")
a("s_waitcnt vmcnt(3)")
stamp()
a(f"v_readfirstlane_b32 s22, {vE}")
a("s_add_u32 s22, s22, 1")
a("s_xor_b32 s23, s22, 0xa5c3a5c3")
a(f"v_mov_b32 {v(vG+2)}, s22")
a(f"v_mov_b32 {v(vG+3)}, s23")
for i in range(4):
    a(f"v_lshlrev_b32 {T(2*i)}, 16, {v(vX+i)}")
    a(f"v_and_b32 {T(2*i+1)}, 0xffff0000, {v(vX+i)}")
a(f"v_add_f32 {T(8)}, {T(0)}, {T(1)}")
a(f"v_add_f32 {T(9)}, {T(2)}, {T(3)}")
a(f"v_add_f32 {T(10)}, {T(4)}, {T(5)}")
a(f"v_add_f32 {T(11)}, {T(6)}, {T(7)}")
a(f"v_add_f32 {T(8)}, {T(8)}, {T(9)}")
a(f"v_add_f32 {T(10)}, {T(10)}, {T(11)}")
a(f"v_add_f32 {T(8)}, {T(8)}, {T(10)}")
red64("v_add_f32", [T(8)], [T(9)])
a(f"v_mul_f32 {T(8)}, 0x3b000000, {T(8)}")
a(f"v_sub_f32 {T(9)}, {T(0)}, {T(8)}")
a(f"v_mul_f32 {T(10)}, {T(9)}, {T(9)}")
for i in range(1, 8):
    a(f"v_sub_f32 {T(9)}, {T(i)}, {T(8)}")
    a(f"v_fmac_f32 {T(10)}, {T(9)}, {T(9)}")
red64("v_add_f32", [T(10)], [T(9)])
a(f"v_mul_f32 {T(10)}, 0x3b000000, {T(10)}")
bf16r(T(8), T(8), T(9))
bf16r(T(10), T(10), T(9))
a(f"v_add_f32 {T(10)}, 0x3727c5ac, {T(10)}")
bf16r(T(10), T(10), T(9))
a(f"v_sqrt_f32 {T(10)}, {T(10)}")
bf16r(T(10), T(10), T(9))
a(f"v_rcp_f32 {T(11)}, {T(10)}")
a(f"v_fma_f32 {T(9)}, -{T(10)}, {T(11)}, 1.0")
a(f"v_fma_f32 {T(11)}, {T(9)}, {T(11)}, {T(11)}")
for i in range(8):
    a(f"v_sub_f32 {T(i)}, {T(i)}, {T(8)}")
for i in range(4):
    a(f"v_cvt_pk_bf16_f32 {T(12+i)}, {T(2*i)}, {T(2*i+1)}")
for i in range(4):
    a(f"v_lshlrev_b32 {T(2*i)}, 16, {T(12+i)}")
    a(f"v_and_b32 {T(2*i+1)}, 0xffff0000, {T(12+i)}")
for i in range(8):
    a(f"v_mul_f32 {T(i)}, {T(i)}, {T(11)}")
for i in range(4):
    a(f"v_cvt_pk_bf16_f32 {T(12+i)}, {T(2*i)}, {T(2*i+1)}")
a(f"ds_write_b128 {v(vOFF+0)}, {vr(14,4)} offset:{L_XN}")
a(f"v_lshrrev_b32 {T(0)}, 3, {vL}")
a("s_lshr_b32 s49, s28, 3")
a("s_lshl_b32 s49, s49, 6")
a("s_lshl_b32 s55, s26, 3")
a("s_add_u32 s49, s49, s55")
a(f"v_add_lshl_u32 {T(0)}, {T(0)}, s49, 2")
a(f"v_and_b32 {T(1)}, 31, {vL}")
a("s_lshl_b32 s49, s26, 5")
a(f"v_add_lshl_u32 {T(1)}, {T(1)}, s49, 2")
a("s_waitcnt lgkmcnt(0)")
a(f"ds_read_b32 {vXP}, {T(0)} offset:{L_XN}")
a(f"ds_read_b32 {vXH}, {T(1)} offset:{L_XN}")

a("s_waitcnt vmcnt(1) lgkmcnt(0)")
stamp()
QA = [v(vA+i) for i in range(8)]
for c in range(4):
    a(f"v_perm_b32 {T(2*c)}, {v(vWQ+4+c)}, {v(vWQ+c)}, {SEL_LO}")
    a(f"v_perm_b32 {T(2*c+1)}, {v(vWQ+4+c)}, {v(vWQ+c)}, {SEL_HI}")
for i in range(8):
    a(f"v_dot2_f32_bf16 {QA[i]}, {T(i)}, {vXP}, 0")
dppstep("v_add_f32", QA, "row_ror:8")
swapred("v_add_f32", QA, [T(i) for i in range(8)], 16)
swapred("v_add_f32", QA, [T(i) for i in range(8)], 32)
a(f"v_lshlrev_b32 {T(1)}, 5, {vL}")
a("s_lshl_b32 s49, s26, 8")
a(f"v_add_u32 {T(1)}, s49, {T(1)}")
exec_set(0xff, 0)
a(f"ds_write_b128 {T(1)}, {vr(vA,4)} offset:{L_QP}")
a(f"ds_write_b128 {T(1)}, {vr(vA+4,4)} offset:{L_QP+16}")
exec_all()
a("s_waitcnt lgkmcnt(0)")
a("s_barrier")
stamp()
a("s_cmp_lg_u32 s26, 0")
a("s_cbranch_scc1 L_noq")
for w in range(8):
    a(f"ds_read_b32 {T(w)}, {v(vOFF+5)} offset:{L_QP+256*w}")
a("s_waitcnt lgkmcnt(0)")
sum8([T(i) for i in range(8)], T(0))
a(f"v_mov_b32_dpp {T(1)}, {T(0)} quad_perm:[1,0,3,2] {DPP}")
a(f"v_cvt_pk_bf16_f32 {T(2)}, {T(0)}, {T(1)}")
a(f"v_lshlrev_b32 {T(3)}, 1, {vL}")
exec_set(0x55555555, 0x55555555)
a(f"ds_write_b32 {T(3)}, {T(2)} offset:{L_QB}")
exec_all()
a(f"v_and_b32 {T(4)}, 15, {vL}")
a(f"v_lshlrev_b32 {T(5)}, 3, {T(4)}")
a("s_waitcnt lgkmcnt(0)")
a(f"ds_read_b64 {vr(vG,2)}, {T(5)} offset:{L_QB}")
a(f"v_add_u32 {T(0)}, s62, {v(vOFF+3)}")
a(f"v_mov_b32 {T(1)}, {T(0)}")
a("s_waitcnt lgkmcnt(0)")
for k in range(8):
    if k:
        a(f"v_add_u32 {T(0)}, {4<<CS}, {T(0)}")
    a(f"global_store_dwordx4 {T(0)}, {vr(vG,4)}, s[56:57]")
a.label("L_noq")
stamp()
a("s_barrier")
for i in range(1, 4):
    a(f"global_load_dwordx4 {vr(vK+4*i,4)}, {v(vOFF+4)}, s[36:37] offset:{64*i} nt")
a("s_cmp_lg_u32 s26, 0")
a("s_cbranch_scc1 L_noqa")
for k in range(8):
    if k:
        a(f"v_add_u32 {T(1)}, {4<<CS}, {T(1)}")
    a(f"global_store_dwordx4 {T(1)}, {vr(vG,4)}, s[58:59] sc1")
a("s_waitcnt vmcnt(10)")
a("s_branch L_noqb")
a.label("L_noqa")
a("s_waitcnt vmcnt(2)")
a.label("L_noqb")
stamp()
a("s_barrier")
a("s_barrier")
for k in range(16):
    a(f"global_load_dword {v(vV+k)}, {v(vOFF+5)}, s[38:39] offset:{256*k} nt")
a(f"global_load_dwordx4 {vr(vW1,4)}, {v(vOFF+2)}, s[44:45]")
a("s_waitcnt vmcnt(17)")
stamp()
a("s_barrier")
for i in range(4):
    a(f"ds_read_b128 {vr(vQ+4*i,4)}, {v(vOFF+4)} offset:{L_QI+64*i}")
stamp()
a("s_waitcnt lgkmcnt(0)")
for i in range(4):
    c = "0" if i == 0 else vr(vD, 4)
    a(f"v_mfma_f32_16x16x32_bf16 {vr(vD,4)}, {vr(vK+4*i,4)}, {vr(vQ+4*i,4)}, {c}")
DD = [v(vD+r) for r in range(4)]
dppstep("v_add_f32", DD, "quad_perm:[1,0,3,2]")
dppstep("v_add_f32", DD, "quad_perm:[2,3,0,1]")
def round4():
    a(f"v_cvt_pk_bf16_f32 {T(0)}, {v(vD)}, {v(vD+1)}")
    a(f"v_cvt_pk_bf16_f32 {T(1)}, {v(vD+2)}, {v(vD+3)}")
    a(f"v_lshlrev_b32 {v(vD)}, 16, {T(0)}")
    a(f"v_and_b32 {v(vD+1)}, 0xffff0000, {T(0)}")
    a(f"v_lshlrev_b32 {v(vD+2)}, 16, {T(1)}")
    a(f"v_and_b32 {v(vD+3)}, 0xffff0000, {T(1)}")
round4()
for r in range(4):
    a(f"v_mul_f32 {v(vD+r)}, s54, {v(vD+r)}")
round4()
a(f"v_max3_f32 {T(2)}, {v(vD)}, {v(vD+1)}, {v(vD+2)}")
a(f"v_max_f32 {T(2)}, {T(2)}, {v(vD+3)}")
swapred("v_max_f32", [T(2)], [T(4)], 16)
swapred("v_max_f32", [T(2)], [T(4)], 32)
for r in range(4):
    a(f"v_sub_f32 {v(vD+r)}, {v(vD+r)}, {T(2)}")
for r in range(4):
    a(f"v_mul_f32 {v(vD+r)}, s53, {v(vD+r)}")
for r in range(4):
    a(f"v_exp_f32 {v(vD+r)}, {v(vD+r)}")
a(f"v_add_f32 {T(3)}, {v(vD)}, {v(vD+1)}")
a(f"v_add_f32 {T(4)}, {v(vD+2)}, {v(vD+3)}")
a(f"v_cvt_pk_bf16_f32 {T(6)}, {v(vD)}, {v(vD+1)}")
a(f"v_cvt_pk_bf16_f32 {T(7)}, {v(vD+2)}, {v(vD+3)}")
a(f"v_add_f32 {T(3)}, {T(3)}, {T(4)}")
swapred("v_add_f32", [T(3)], [T(4)], 16)
swapred("v_add_f32", [T(3)], [T(4)], 32)
for h in range(4):
    for kq in range(4):
        a(f"v_readlane_b32 s{sP0+h*8+2*kq}, {T(6)}, {kq*16+h*4}")
        a(f"v_readlane_b32 s{sP0+h*8+2*kq+1}, {T(7)}, {kq*16+h*4}")
a(f"v_lshlrev_b32 {T(8)}, 1, {vL}")
a("s_lshl_b32 s49, s26, 5")
a(f"v_add_u32 {T(8)}, s49, {T(8)}")
exec_set(0x1111, 0)
a(f"ds_write_b64 {T(8)}, {vr(4,2)} offset:{L_ML}")
exec_all()
OA = [[v(vA+2*h), v(vA+2*h+1)] for h in range(4)]
def pv(t):
    a(f"v_perm_b32 {T(10)}, {v(vV+2*t+1)}, {v(vV+2*t)}, {SEL_LO}")
    a(f"v_perm_b32 {T(11)}, {v(vV+2*t+1)}, {v(vV+2*t)}, {SEL_HI}")
    for h in range(4):
        if t == 0:
            a(f"v_dot2_f32_bf16 {OA[h][0]}, {T(10)}, s{sP0+h*8+t}, 0")
            a(f"v_dot2_f32_bf16 {OA[h][1]}, {T(11)}, s{sP0+h*8+t}, 0")
        else:
            a(f"v_dot2_f32_bf16 {OA[h][0]}, {T(10)}, s{sP0+h*8+t}, {OA[h][0]}")
            a(f"v_dot2_f32_bf16 {OA[h][1]}, {T(11)}, s{sP0+h*8+t}, {OA[h][1]}")
a("s_waitcnt vmcnt(9)")
for t in range(4):
    pv(t)
a("s_waitcnt vmcnt(1)")
stamp()
for t in range(4, 8):
    pv(t)
a("s_lshl_b32 s49, s26, 11")
a(f"v_add_u32 {T(8)}, s49, {v(vOFF+12)}")
for h in range(4):
    a(f"ds_write_b64 {T(8)}, {vr(vA+2*h,2)} offset:{L_O+512*h}")
a("s_waitcnt lgkmcnt(0)")
a("s_barrier")
a("s_lshr_b32 s49, s26, 1")
a("s_lshl_b32 s55, s49, 3")
a(f"v_mov_b32 {T(16)}, s55")
a(f"v_and_b32 {T(15)}, 127, {vTID}")
a(f"v_lshlrev_b32 {T(17)}, 2, {T(15)}")
a("s_lshl_b32 s55, s49, 9")
a(f"v_add_u32 {T(17)}, s55, {T(17)}")
for w in range(8):
    a(f"ds_read_b64 {vr(vK+2*w,2)}, {T(16)} offset:{L_ML+32*w}")
for w in range(8):
    a(f"ds_read_b32 {v(vV+w)}, {T(17)} offset:{L_O+2048*w}")
a("s_lshr_b32 s49, s26, 1")
a(f"s_lshl_b32 s49, s49, {CS+3}")
a("s_lshl_b32 s55, s28, 8")
a("s_add_u32 s49, s49, s55")
a(f"s_add_u32 s49, s49, {R_O}")
a(f"v_lshrrev_b32 {T(8)}, 4, {T(15)}")
a(f"v_lshlrev_b32 {T(8)}, {CS}, {T(8)}")
a(f"v_and_b32 {T(6)}, 15, {T(15)}")
a(f"v_lshlrev_b32 {T(6)}, 3, {T(6)}")
a(f"v_add3_u32 {T(8)}, {T(8)}, {T(6)}, s49")
a(f"v_lshlrev_b32 {T(9)}, {CS}, {T(15)}")
a(f"v_add_u32 {T(9)}, s49, {T(9)}")
a(f"v_mov_b32 {T(4)}, s22")
a(f"v_mov_b32 {T(5)}, s23")
a("s_waitcnt lgkmcnt(0)")
a(f"v_max3_f32 {T(2)}, {v(vK)}, {v(vK+2)}, {v(vK+4)}")
a(f"v_max3_f32 {T(2)}, {T(2)}, {v(vK+6)}, {v(vK+8)}")
a(f"v_max3_f32 {T(2)}, {T(2)}, {v(vK+10)}, {v(vK+12)}")
a(f"v_max_f32 {T(2)}, {T(2)}, {v(vK+14)}")
for w in range(8):
    a(f"v_sub_f32 {v(vK+2*w)}, {v(vK+2*w)}, {T(2)}")
for w in range(8):
    a(f"v_mul_f32 {v(vK+2*w)}, s53, {v(vK+2*w)}")
for w in range(8):
    a(f"v_exp_f32 {v(vK+2*w)}, {v(vK+2*w)}")
a(f"v_mul_f32 {T(3)}, {v(vK)}, {v(vK+1)}")
a(f"v_mul_f32 {v(vG)}, {v(vK)}, {v(vV)}")
for w in range(1, 8):
    a(f"v_fmac_f32 {T(3)}, {v(vK+2*w)}, {v(vK+2*w+1)}")
    a(f"v_fmac_f32 {v(vG)}, {v(vK+2*w)}, {v(vV+w)}")
a(f"v_mov_b32_dpp {v(vG+1)}, {v(vG)} quad_perm:[1,0,3,2] {DPP}")
exec_set(0x55555555, 0x55555555)
a(f"global_store_dwordx4 {T(8)}, {vr(vG,4)}, s[56:57]")
exec_all()
a(f"v_cmp_gt_u32 vcc, 8, {T(15)}")
a("s_and_saveexec_b64 s[50:51], vcc")
a("s_cbranch_execz L_noml")
a(f"global_store_dwordx4 {T(9)}, {vr(4,4)}, s[56:57] offset:128")
a.label("L_noml")
exec_all()
a(f"global_load_dwordx4 {vr(vWO,4)}, {v(vOFF+0)}, s[40:41] nt")
a(f"global_load_dwordx4 {vr(vWO+4,4)}, {v(vOFF+0)}, s[40:41] offset:1024 nt")
a(f"global_load_dwordx4 {vr(vW2,4)}, {v(vOFF+0)}, s[42:43] nt")
a("s_and_saveexec_b64 s[50:51], vcc")
a("s_cbranch_execz L_noml2")
a(f"global_store_dwordx4 {T(9)}, {vr(4,4)}, s[58:59] offset:128 sc1")
a.label("L_noml2")
exec_set(0x55555555, 0x55555555)
a(f"global_store_dwordx4 {T(8)}, {vr(vG,4)}, s[58:59] sc1")
exec_all()
stamp()
a("s_waitcnt vmcnt(5)")
HA = [v(vA+8+i) for i in range(4)]
a(f"v_permlane32_swap_b32 {v(vW1+0)}, {v(vW1+2)}")
a(f"v_permlane32_swap_b32 {v(vW1+1)}, {v(vW1+3)}")
for c in range(2):
    a(f"v_perm_b32 {T(2*c)}, {v(vW1+2+c)}, {v(vW1+c)}, {SEL_LO}")
    a(f"v_perm_b32 {T(2*c+1)}, {v(vW1+2+c)}, {v(vW1+c)}, {SEL_HI}")
for i in range(4):
    a(f"v_dot2_f32_bf16 {HA[i]}, {T(i)}, {vXH}, 0")
red32("v_add_f32", HA, [T(i) for i in range(4)])
a(f"v_lshrrev_b32 {T(0)}, 5, {vL}")
a(f"v_lshlrev_b32 {T(2)}, 4, {T(0)}")
a("s_lshl_b32 s49, s26, 5")
a(f"v_add_u32 {T(2)}, s49, {T(2)}")
exec_set(1, 1)
a(f"ds_write_b128 {T(2)}, {vr(vA+8,4)} offset:{L_HP}")
exec_all()
PM, PO = vP, vP + 2
a("s_waitcnt vmcnt(0) lgkmcnt(0)")
a("s_barrier")
a("s_lshl_b32 s55, s26, 2")
a(f"v_mov_b32 {T(14)}, s55")
for w in range(8):
    a(f"ds_read_b32 {v(vV+8+w)}, {T(14)} offset:{L_HP+32*w}")
a(f"ds_read_b64 {vr(PM,2)}, {v(vOFF+10)} offset:{L_OI+64}")
a(f"ds_read_b64 {vr(PO,2)}, {v(vOFF+11)} offset:{L_OI}")
a("s_waitcnt lgkmcnt(0)")
sum8([v(vV+8+i) for i in range(8)], T(16))
bf16r(T(16), T(16), T(17))
a(f"v_max_f32 {T(16)}, 0, {T(16)}")
a(f"v_and_b32 {T(16)}, s48, {T(16)}")
a(f"v_mov_b32 {T(0)}, {v(PM)}")
red32("v_max_f32", [T(0)], [T(1)])
a(f"v_sub_f32 {T(0)}, {v(PM)}, {T(0)}")
a(f"v_mul_f32 {T(0)}, s53, {T(0)}")
a(f"v_exp_f32 {T(0)}, {T(0)}")
a(f"v_mul_f32 {T(1)}, {T(0)}, {v(PM+1)}")
a(f"v_mul_f32 {T(2)}, {T(0)}, {v(PO)}")
a(f"v_mul_f32 {T(3)}, {T(0)}, {v(PO+1)}")
red32("v_add_f32", [T(1), T(2), T(3)], [T(4), T(5), T(6)])
a(f"v_rcp_f32 {T(4)}, {T(1)}")
a(f"v_fma_f32 {T(5)}, -{T(1)}, {T(4)}, 1.0")
a(f"v_fma_f32 {T(4)}, {T(5)}, {T(4)}, {T(4)}")
a(f"v_mul_f32 {T(2)}, {T(2)}, {T(4)}")
a(f"v_mul_f32 {T(3)}, {T(3)}, {T(4)}")
a(f"v_cvt_pk_bf16_f32 {T(0)}, {T(2)}, {T(3)}")
for c in range(4):
    a(f"v_perm_b32 {T(2+2*c)}, {v(vWO+4+c)}, {v(vWO+c)}, {SEL_LO}")
    a(f"v_perm_b32 {T(3+2*c)}, {v(vWO+4+c)}, {v(vWO+c)}, {SEL_HI}")
for i in range(8):
    a(f"v_dot2_f32_bf16 {v(vA+i)}, {T(2+i)}, {T(0)}, 0")
for c in range(4):
    a(f"v_lshlrev_b32 {v(vA+8+2*c)}, 16, {v(vW2+c)}")
    a(f"v_and_b32 {v(vA+9+2*c)}, 0xffff0000, {v(vW2+c)}")
for i in range(8):
    a(f"v_mul_f32 {v(vA+8+i)}, {v(vA+8+i)}, {T(16)}")
a(f"v_lshlrev_b32 {T(10)}, 5, {vL}")
a("s_lshl_b32 s49, s26, 12")
a(f"v_add_u32 {T(10)}, s49, {T(10)}")
a(f"ds_write_b128 {T(10)}, {vr(vA,4)} offset:{L_AB}")
a(f"ds_write_b128 {T(10)}, {vr(vA+4,4)} offset:{L_AB+16}")
a(f"ds_write_b128 {T(10)}, {vr(vA+8,4)} offset:{L_AB+2048}")
a(f"ds_write_b128 {T(10)}, {vr(vA+12,4)} offset:{L_AB+2048+16}")
a("s_waitcnt lgkmcnt(0)")
a("s_barrier")
a(f"v_lshlrev_b32 {T(16)}, 2, {vTID}")
for w in range(8):
    a(f"ds_read_b32 {v(vK+w)}, {T(16)} offset:{L_AB+4096*w}")
    a(f"ds_read_b32 {v(vK+8+w)}, {T(16)} offset:{L_AB+4096*w+2048}")
a(f"v_lshrrev_b32 {T(6)}, 4, {vTID}")
a(f"v_lshlrev_b32 {T(6)}, {CS}, {T(6)}")
a(f"v_and_b32 {T(7)}, 15, {vTID}")
a(f"v_lshlrev_b32 {T(7)}, 4, {T(7)}")
a("s_lshl_b32 s49, s28, 8")
a(f"s_add_u32 s49, s49, {R_FA}")
a(f"v_add3_u32 {T(6)}, {T(6)}, {T(7)}, s49")
a("s_waitcnt lgkmcnt(0)")
sum8([v(vK+i) for i in range(8)], v(vG))
sum8([v(vK+8+i) for i in range(8)], v(vG+1))
a(f"global_store_dwordx4 {T(6)}, {vr(vG,4)}, s[56:57]")
a(f"global_store_dwordx4 {T(6)}, {vr(vG,4)}, s[58:59] sc1")
if STAMPS:
    a("s_cmp_lg_u32 s26, 0")
    a("s_cbranch_scc1 L_end")
    stamp()
    a(f"v_writelane_b32 {vST}, s52, 31")
    a("s_lshl_b32 s49, s2, 7")
    a(f"s_add_u32 s49, s49, {STAMP_OFF+0x100000:#x}")
    a(f"v_add_u32 {T(10)}, s49, {v(vOFF+5)}")
    exec_set(0xffffffff, 0)
    a(f"global_store_dword {T(10)}, {vST}, s[24:25]")
    exec_all()
a("s_branch L_end")
a.label("L_comm")
for i in range(4):
    a(f"v_mov_b32 {T(12+i)}, 0")
a("s_lshl_b32 s49, s28, 8")
a(f"s_add_u32 s50, s49, {R_O}")
a(f"s_add_u32 s51, s49, {R_FA}")
for sreg in ("s62", "s50", "s51"):
    a(f"v_add_u32 {T(11)}, {sreg}, {v(vOFF+3)}")
    for k in range(8):
        if k:
            a(f"v_add_u32 {T(11)}, {4<<CS}, {T(11)}")
        a(f"global_store_dwordx4 {T(11)}, {vr(14,4)}, s[56:57]")
a("s_waitcnt vmcnt(24)")
a(f"v_readfirstlane_b32 s22, {vE}")
a("s_add_u32 s22, s22, 1")
a("s_xor_b32 s23, s22, 0xa5c3a5c3")
a(f"v_mov_b32 {v(vG+2)}, s22")
a(f"v_mov_b32 {v(vG+3)}, s23")
stamp()
a("s_barrier")
a("s_barrier")
a("s_barrier")
inbox_loads(v(vOFF+0), 8)
a("s_barrier")
a("s_waitcnt vmcnt(0)")
stamp()
poll_loop("q", v(vOFF+0), 8, first_issued=True)
for k in range(8):
    a(f"ds_write_b64 {v(vOFF+12)}, {vr(vP+4*k,2)} offset:{L_QI+512*k}")
a("s_waitcnt lgkmcnt(0)")
stamp()
a("s_barrier")
a("s_barrier")
stamp()
poll_loop("o", v(vOFF+14), 8)
for k in range(8):
    a(f"ds_write_b64 {v(vOFF+13)}, {vr(vP+4*k,2)} offset:{L_OI+512*k}")
a("s_waitcnt lgkmcnt(0)")
stamp()
a("s_barrier")
a("s_barrier")
stamp()
poll_loop("fa", v(vOFF+15), 8)
stamp()
for c in range(2):
    sum8([v(vP+4*k+c) for k in range(8)], v(vG+c))
GG = [v(vG), v(vG+1)]
swapred("v_add_f32", GG, [T(0), T(1)], 16)
swapred("v_add_f32", GG, [T(0), T(1)], 32)
a("s_lshl_b32 s49, s27, 8")
a("s_add_u32 s49, s49, s3")
a(f"s_add_u32 s49, s49, {R_FB}")
a(f"v_add_u32 {T(0)}, s49, {v(vOFF+0)}")
exec_set(0xffff, 0)
a(f"global_store_dwordx4 {T(0)}, {vr(vG,4)}, s[24:25] sc1")
exec_all()
a("s_and_b32 s49, s28, 7")
a("s_cmp_lg_u32 s49, s27")
a("s_cbranch_scc1 L_fin")
a(f"v_lshlrev_b32 {T(10)}, 1, {vL}")
a("s_lshl_b32 s49, s28, 5")
a(f"v_add_u32 {T(10)}, s49, {T(10)}")
exec_set(0xffff, 0)
a(f"global_load_ushort {T(12)}, {T(10)}, s[4:5]")
exec_all()
a(f"v_add_u32 {T(11)}, {R_FB}, {v(vOFF+0)}")
poll_loop("fb", T(11), 2, dual=False)
a(f"v_add_f32 {v(vG)}, {v(vP)}, {v(vP+4)}")
a(f"v_add_f32 {v(vG+1)}, {v(vP+1)}, {v(vP+5)}")
swapred("v_add_f32", GG, [T(0), T(1)], 16)
swapred("v_add_f32", GG, [T(0), T(1)], 32)
a(f"v_cvt_pk_bf16_f32 {T(0)}, {v(vG)}, {v(vG+1)}")
a(f"v_lshlrev_b32 {T(1)}, 16, {T(0)}")
a(f"v_and_b32 {T(2)}, 0xffff0000, {T(0)}")
a(f"v_lshlrev_b32 {T(3)}, 16, {T(12)}")
a(f"v_add_f32 {T(1)}, {T(1)}, {T(3)}")
bf16r(T(1), T(1), T(4))
a(f"v_add_f32 {T(1)}, {T(1)}, {T(2)}")
a(f"v_cvt_pk_bf16_f32 {T(0)}, {T(1)}, {T(1)}")
exec_set(0xffff, 0)
a(f"global_store_short {T(10)}, {T(0)}, s[20:21]")
exec_all()
a("s_cmp_lg_u32 s2, 0")
a("s_cbranch_scc1 L_fin")
a(f"v_mov_b32 {T(1)}, {EPOCH:#x}")
a(f"v_mov_b32 {T(2)}, s22")
exec_set(1, 0)
a(f"global_store_dword {T(1)}, {T(2)}, s[24:25]")
exec_all()
a.label("L_fin")
def stamp_store(extra):
    a(f"v_writelane_b32 {vST}, s52, 31")
    a("s_lshl_b32 s49, s2, 7")
    a(f"s_add_u32 s49, s49, {STAMP_OFF+extra:#x}")
    a(f"v_add_u32 {T(10)}, s49, {v(vOFF+5)}")
    exec_set(0xffffffff, 0)
    a(f"global_store_dword {T(10)}, {vST}, s[24:25]")
    exec_all()
if STAMPS:
    stamp()
    stamp_store(0)
a.label("L_end")
a("s_endpgm")
a.raw(f""".section .rodata,"a"
.p2align 6
.amdhsa_kernel {NAME}_kernel
  .amdhsa_next_free_vgpr {NVGPR}
  .amdhsa_next_free_sgpr 102
  .amdhsa_accum_offset {NVGPR}
  .amdhsa_group_segment_fixed_size 0
  .amdhsa_kernarg_size 88
  .amdhsa_user_sgpr_count 2
  .amdhsa_user_sgpr_kernarg_segment_ptr 1
  .amdhsa_system_sgpr_workgroup_id_x 1
  .amdhsa_float_denorm_mode_32 3
  .amdhsa_float_denorm_mode_16_64 3
.end_amdhsa_kernel""")

out = sys.argv[1]
open(out, "w").write(a.text())
```

```python
import re

TRANS = ("v_exp_f32", "v_log_f32", "v_rcp_f32", "v_rsq_f32", "v_sqrt_f32", "v_sin_f32", "v_cos_f32")

def regs_of(tok):
    tok = tok.strip()
    tok = tok.lstrip("-").replace("abs(", "").replace(")", "").replace("|", "")
    m = re.fullmatch(r"([vs])\[(\d+):(\d+)\]", tok)
    if m:
        return [f"{m.group(1)}{i}" for i in range(int(m.group(2)), int(m.group(3)) + 1)]
    m = re.fullmatch(r"([vs])(\d+)", tok)
    if m:
        return [tok]
    if tok in ("vcc", "exec"):
        return [tok]
    return []

class Asm:
    def __init__(self):
        self.lines = []
        self.hist = []
        self.guard = False
        self.ingroup = None
        self.ngroup = 0

    def _close(self):
        if self.ingroup:
            self.lines.append(f"{self.ingroup}:")
            self.ingroup = None

    def raw(self, text):
        self.lines.append(text)

    def label(self, name):
        self._close()
        self.lines.append(f"{name}:")
        self.lines.append("    s_nop 7")
        self.hist = []

    def comment(self, t):
        self.lines.append(f"    ; {t}")

    def _split(self, text):
        text = text.split(";")[0].strip()
        parts = text.split(None, 1)
        op = parts[0]
        rest = parts[1] if len(parts) > 1 else ""
        rest = re.sub(r"\s*,\s*", ",", rest.strip())
        rest = rest.split()[0] if rest else ""
        ops = [o.strip() for o in rest.split(",")]
        return op, [o for o in ops if o]

    def __call__(self, text):
        op, ops = self._split(text)
        guarded = self.guard and (op.startswith("global_") or op == "s_barrier" or (op == "s_waitcnt" and "vmcnt" in text))
        if guarded and not self.ingroup:
            self.ngroup += 1
            self.ingroup = f"L_g{self.ngroup}"
            self.lines.append(f"    s_cbranch_execz {self.ingroup}")
            self.hist.append(("salu", "s_cbranch_execz", [], [], 1))
        elif not guarded:
            self._close()
        is_dpp = "_dpp" in op or "quad_perm" in text or "row_" in text
        kind = None
        dsts, srcs = [], []
        if op.startswith("v_"):
            kind = "valu"
            if op.startswith("v_cmp"):
                dsts = regs_of(ops[0]); srcs = sum((regs_of(o) for o in ops[1:]), [])
            elif op.startswith("v_permlane"):
                dsts = regs_of(ops[0]) + regs_of(ops[1]); srcs = list(dsts)
            elif op.startswith("v_mfma"):
                kind = "mfma"
                dsts = regs_of(ops[0]); srcs = sum((regs_of(o) for o in ops[1:]), [])
            else:
                dsts = regs_of(ops[0]); srcs = sum((regs_of(o) for o in ops[1:]), [])
                if op.startswith("v_dot2c") or op.startswith("v_fmac"):
                    srcs += dsts
                if op.startswith("v_cndmask") and len(ops) == 3:
                    srcs.append("vcc")
        elif op.startswith("global_") or op.startswith("buffer_") or op.startswith("ds_"):
            kind = "mem"
            if "load" in op or op.startswith("ds_read") or op.startswith("ds_bperm"):
                dsts = regs_of(ops[0]); srcs = sum((regs_of(o) for o in ops[1:]), [])
            else:
                srcs = sum((regs_of(o) for o in ops), [])
        elif op.startswith("s_"):
            kind = "salu"
            if op in ("s_nop", "s_waitcnt", "s_barrier", "s_sleep", "s_branch", "s_endpgm") or op.startswith("s_cbranch") or op.startswith("s_cmp"):
                srcs = sum((regs_of(o) for o in ops), [])
            else:
                dsts = regs_of(ops[0]); srcs = sum((regs_of(o) for o in ops[1:]), [])
        need = 0
        dist = 0
        for (k, o, d, s, cost) in reversed(self.hist):
            req = 0
            ds = set(d)
            rd = ds & set(srcs)
            wr = ds & set(dsts)
            if k == "valu":
                vrd = [r for r in rd if r.startswith("v") and r != "vcc"]
                srd = [r for r in rd if r.startswith("s") or r in ("vcc",)]
                if kind == "valu" and is_dpp and vrd: req = max(req, 2)
                if op.startswith("v_permlane") and (vrd or wr): req = max(req, 2)
                if o in TRANS and kind in ("valu", "mfma") and op not in TRANS and vrd: req = max(req, 1)
                if op.startswith("v_readlane") or op.startswith("v_readfirstlane"):
                    if vrd: req = max(req, 1)
                    if srd: req = max(req, 4)
                if srd and kind in ("valu", "mfma"): req = max(req, 2)
                if srd and kind == "mem": req = max(req, 5)
                if srd and kind == "salu": req = max(req, 2)
                if kind == "mfma" and vrd: req = max(req, 2)
                if o.startswith("v_dot2") and (vrd or wr):
                    if not (op == o and not (ds & set(sum((regs_of(x) for x in ops[1:3]), [])))):
                        req = max(req, 3)
                if "exec" in ds and is_dpp: req = max(req, 5)
            if k == "mfma":
                if kind == "mfma":
                    ab = set(sum((regs_of(x) for x in ops[1:3]), []))
                    if ds & ab: req = max(req, 8)
                    c = set(regs_of(ops[3]))
                    if (ds & c) and ds != c: req = max(req, 6)
                elif rd or wr:
                    req = max(req, 8)
            if k == "mem" and ("store" in o or "write" in o) and ("x4" in o or "x3" in o or "b128" in o or "b96" in o):
                if kind in ("valu", "mfma") and set(s) & set(dsts): req = max(req, 2)
            if req > dist:
                need = max(need, req - dist)
            dist += cost
            if dist > 12: break
        if need > 0:
            self.lines.append(f"    s_nop {need-1}")
            self.hist.append(("salu", "s_nop", [], [], need))
        self.lines.append("    " + text)
        cost = 1
        if op == "s_nop":
            cost = int(ops[0]) + 1
        self.hist.append((kind, op, dsts, srcs, cost))
        if len(self.hist) > 40:
            self.hist = self.hist[-40:]

    def text(self):
        self._close()
        return "\n".join(self.lines) + "\n"
```

```python
import sys
from asmlib import Asm

NAME = "parallel_sum__sliding_block_cached__dense_activation_relu__decode"
STAMPS = "--stamps" in sys.argv
N1 = 8
SPIN_CAP = 400000

L_XN = 0
L_QP = 1024
L_QB = 3072
L_MODE = 3200
L_HP = 3328
L_ML = 3584
L_O = 4096
L_AB = 20480
L_QI = 53248
L_OI = 57344
LDS_BYTES = 90112

R_Q = 0
R_O = 8192
R_FA = 16384
R_FB = 24576
R_B = 32768
SH = 16
CS = SH + 3
STAMP_OFF = 20 << 20
EPOCH = 24 << 20

a = Asm()

vTID, vL = "v0", "v1"
def T(i): return f"v{2+i}"
vX = 20
vST = "v24"
vXP = "v25"
vWQ = 28
vW1 = 36
vK = 40
vV = 56
vWO = 72
vW2 = 80
vQ = 84
vD = 100
vA = 104
vOFF = 120
vP = 40
vXH = "v26"
vE = "v27"
vG = 136
NVGPR = 140
def v(i): return f"v{i}"
def vr(i, n): return f"v[{i}:{i+n-1}]"

SEL_LO, SEL_HI = "s46", "s47"
sP0 = 68
nstamp = [0]
def stamp():
    if not STAMPS: return
    i = nstamp[0]; nstamp[0] += 1
    a("s_memrealtime s[100:101]")
    a("s_waitcnt lgkmcnt(0)")
    a(f"v_writelane_b32 {vST}, s100, {i}")

DPP = "row_mask:0xf bank_mask:0xf"
def dppstep(op, regs, pat):
    for r in regs:
        a(f"{op}_dpp {r}, {r}, {r} {pat} {DPP}")
def red16(op, regs):
    for pat in ("quad_perm:[1,0,3,2]", "quad_perm:[2,3,0,1]", "row_half_mirror", "row_mirror"):
        dppstep(op, regs, pat)
def swapred(op, regs, tmps, which):
    for r, t in zip(regs, tmps):
        a(f"v_mov_b32 {t}, {r}")
    for r, t in zip(regs, tmps):
        a(f"v_permlane{which}_swap_b32 {r}, {t}")
    for r, t in zip(regs, tmps):
        a(f"{op} {r}, {r}, {t}")
def red32(op, regs, tmps):
    red16(op, regs); swapred(op, regs, tmps, 16)
def red64(op, regs, tmps):
    red32(op, regs, tmps); swapred(op, regs, tmps, 32)
def bf16r(dst, src, tmp):
    a(f"v_cvt_pk_bf16_f32 {tmp}, {src}, {src}")
    a(f"v_lshlrev_b32 {dst}, 16, {tmp}")
def exec_set(lo, hi):
    a(f"s_and_b32 exec_lo, s16, {lo:#x}")
    a(f"s_and_b32 exec_hi, s17, {hi:#x}")
def exec_all():
    a("s_mov_b64 exec, s[16:17]")
def sec(k):
    a("s_cbranch_execz L_dry_done")
    a._close()
    a.raw(f"L_sec{k}:")
def dry_enter(which, names):
    a(f"s_mov_b32 s19, {which}")
    a("s_mov_b32 s18, s26")
    a("s_mov_b64 s[16:17], 0")
    a("s_mov_b64 exec, 0")
    a("s_mov_b32 s26, 0")
    for k in range(1, 8):
        a(f"s_cmp_eq_u32 s18, {k}")
        a(f"s_cbranch_scc1 L_sec{names[k]}")
    a(f"s_branch L_sec{names[0]}")
def add64(dst, base, off):
    a(f"s_add_u32 s{dst}, s{base}, {off}")
    a(f"s_addc_u32 s{dst+1}, s{base+1}, 0")
def sum8(regs, dst):
    r = regs
    a(f"v_add_f32 {r[0]}, {r[0]}, {r[1]}")
    a(f"v_add_f32 {r[2]}, {r[2]}, {r[3]}")
    a(f"v_add_f32 {r[4]}, {r[4]}, {r[5]}")
    a(f"v_add_f32 {r[6]}, {r[6]}, {r[7]}")
    a(f"v_add_f32 {r[0]}, {r[0]}, {r[2]}")
    a(f"v_add_f32 {r[4]}, {r[4]}, {r[6]}")
    a(f"v_add_f32 {dst}, {r[0]}, {r[4]}")
SELB = [False]
def inbox_loads(offreg, n, b=False):
    lo, hi = ("s[34:35]", "s[60:61]") if b else ("s[30:31]", "s[32:33]")
    if SELB[0]:
        lo, hi = "s[64:65]", "s[66:67]"
    for k in range(n):
        base = lo if k < 4 else hi
        a(f"global_load_dwordx4 {vr(vP+4*k,4)}, {offreg}, {base} offset:{1024*(k%4)} sc1")
def tagcheck(n):
    a(f"v_xor_b32 {T(0)}, s22, {v(vP+2)}")
    a(f"v_xor_b32 {T(1)}, s23, {v(vP+3)}")
    a(f"v_or_b32 {T(0)}, {T(0)}, {T(1)}")
    for k in range(1, n):
        a(f"v_xor_b32 {T(1)}, s22, {v(vP+4*k+2)}")
        a(f"v_xor_b32 {T(2)}, s23, {v(vP+4*k+3)}")
        a(f"v_or3_b32 {T(0)}, {T(0)}, {T(1)}, {T(2)}")
    a(f"v_cmp_ne_u32 vcc, 0, {T(0)}")
    a("s_cmp_eq_u64 vcc, 0")
def tagcheck_q(n):
    for k in range(n):
        a(f"v_xor_b32 {T(1)}, s22, {v(vP+4*k+2)}")
        a(f"v_xor_b32 {T(2)}, s15, {v(vP+4*k+3)}")
        if k == 0:
            a(f"v_mov_b32 {T(3)}, {T(2)}")
            a(f"v_mov_b32 {T(0)}, {T(1)}")
        else:
            a(f"v_or_b32 {T(3)}, {T(3)}, {T(2)}")
            a(f"v_or_b32 {T(0)}, {T(0)}, {T(1)}")
    a(f"v_and_b32 {T(2)}, -8, {T(3)}")
    a(f"v_or_b32 {T(0)}, {T(0)}, {T(2)}")
    a(f"v_cmp_ne_u32 vcc, 0, {T(0)}")
    a("s_cmp_eq_u64 vcc, 0")
def spin_guard():
    a("s_add_u32 s52, s52, 1")
    a(f"s_cmp_gt_u32 s52, {SPIN_CAP}")
    a("s_cbranch_scc1 L_end")
def poll_loop(name, offreg, n, first_issued=False, dual=True, tagcheck=tagcheck):
    if first_issued:
        tagcheck(n)
        a(f"s_cbranch_scc1 L_{name}_ok")
    a.label(f"L_{name}_loop")
    inbox_loads(offreg, n)
    spin_guard()
    a("s_waitcnt vmcnt(0)")
    tagcheck(n)
    if not dual:
        a(f"s_cbranch_scc0 L_{name}_loop")
    else:
        a(f"s_cbranch_scc1 L_{name}_ok")
        a("s_and_b32 s49, s52, 3")
        a("s_cmp_lg_u32 s49, 3")
        a(f"s_cbranch_scc1 L_{name}_loop")
        inbox_loads(offreg, n, b=True)
        a("s_waitcnt vmcnt(0)")
        tagcheck(n)
        a(f"s_cbranch_scc0 L_{name}_loop")
    a.label(f"L_{name}_ok")

a.raw(f"""; Kernarg layout: x, k_cache, v_cache, wq, wo, B_x, w1, w2, out, debug, ws (8-byte pointers)
; @launch grid=(256,1,1) block=(576,1,1) lds={LDS_BYTES}
.amdgcn_target "amdgcn-amd-amdhsa--gfx950"
.text
.globl {NAME}_kernel
.p2align 8
.type {NAME}_kernel,@function
{NAME}_kernel:""")

a("s_cmp_ge_u32 s2, 256")
a("s_cbranch_scc1 L_end")
a("s_load_dwordx16 s[4:19], s[0:1], 0")
a("s_load_dwordx4 s[20:23], s[0:1], 64")
a("s_load_dwordx2 s[24:25], s[0:1], 80")
stamp()
a(f"v_and_b32 {vL}, 63, {vTID}")
a(f"v_lshrrev_b32 {T(0)}, 6, {vTID}")
a(f"v_readfirstlane_b32 s26, {T(0)}")
a("s_and_b32 s27, s2, 7")
a("s_lshr_b32 s28, s2, 3")
a(f"v_lshlrev_b32 {v(vOFF+0)}, 4, {vL}")
a(f"v_lshrrev_b32 {T(6)}, 3, {vL}")
a(f"v_and_b32 {T(7)}, 7, {vL}")
a(f"v_lshlrev_b32 {v(vOFF+1)}, 14, {T(6)}")
a(f"v_lshl_add_u32 {v(vOFF+1)}, {T(7)}, 4, {v(vOFF+1)}")
a(f"v_mov_b32 {T(8)}, {EPOCH:#x}")
a(f"v_and_b32 {T(9)}, 15, {vL}")
a(f"v_lshrrev_b32 {T(10)}, 4, {vL}")
a(f"v_lshlrev_b32 {v(vOFF+3)}, {CS}, {T(10)}")
a(f"v_lshl_add_u32 {v(vOFF+3)}, {T(9)}, 4, {v(vOFF+3)}")
a("s_and_b32 s49, s28, 7")
a("s_lshr_b32 s49, s49, 1")
a("s_lshl_b32 s49, s49, 2")
a("s_lshr_b32 s55, s28, 3")
a("s_add_u32 s49, s49, s55")
a("s_lshl_b32 s49, s49, 9")
a("s_and_b32 s55, s28, 1")
a("s_lshl_b32 s55, s55, 8")
a("s_add_u32 s62, s49, s55")
a("s_lshr_b32 s49, s28, 3")
a("s_lshl_b32 s49, s49, 7")
a("s_lshl_b32 s55, s26, 4")
a("s_add_u32 s49, s49, s55")
a("s_lshl_b32 s49, s49, 13")
a("s_lshl_b32 s55, s27, 10")
a("s_add_u32 s49, s49, s55")
a("s_and_b32 s55, s28, 7")
a("s_lshl_b32 s55, s55, 7")
a("s_add_u32 s49, s49, s55")
a(f"s_lshl_b32 s55, s27, {SH}")
a("s_waitcnt lgkmcnt(0)")
a("s_getreg_b32 s14, hwreg(HW_REG_XCC_ID, 0, 3)")
add64(56, 24, "s55")
add64(64, 10, "s49")
add64(66, 64, 8192)
a(f"global_load_dword {vE}, {T(8)}, s[24:25]")
a("s_cmp_eq_u32 s26, 8")
a("s_cbranch_scc1 L_nold")
a(f"global_load_dwordx4 {vr(vX,4)}, {v(vOFF+0)}, s[4:5]")
a(f"global_load_dwordx4 {vr(vWQ,4)}, {v(vOFF+1)}, s[64:65] nt")
a(f"global_load_dwordx4 {vr(vWQ+4,4)}, {v(vOFF+1)}, s[66:67] nt")
a.label("L_nold")
a(f"v_lshlrev_b32 {v(vOFF+4)}, 8, {T(9)}")
a(f"v_lshl_add_u32 {v(vOFF+4)}, {T(10)}, 4, {v(vOFF+4)}")
a("s_lshl_b32 s50, s27, 24")
a("s_add_u32 s50, s50, 0xf00000")
a("s_lshl_b32 s55, s28, 15")
a("s_add_u32 s50, s50, s55")
a("s_lshl_b32 s55, s26, 12")
a("s_add_u32 s50, s50, s55")
add64(36, 6, "s50")
add64(38, 8, "s50")
add64(58, 56, R_B)
a(f"s_mov_b32 {SEL_LO}, 0x05040100")
a(f"s_mov_b32 {SEL_HI}, 0x07060302")
a("s_mov_b32 s53, 0x3fb8aa3b")
a("s_mov_b32 s54, 0x3db504f3")
a("s_mov_b32 s52, 0")
a("s_mul_i32 s29, s27, 28")
a("s_add_u32 s29, s29, s28")
a("s_cmp_lt_u32 s28, 28")
a("s_cselect_b32 s29, s29, 0")
a("s_cselect_b32 s48, -1, 0")
a(f"s_lshl_b32 s49, s2, {SH}")
add64(30, 24, "s49")
add64(32, 30, 4096)
add64(34, 30, R_B)
add64(60, 30, R_B + 4096)
a("s_mul_i32 s49, s26, 229376")
a("s_lshl_b32 s55, s29, 4")
a("s_add_u32 s49, s49, s55")
add64(44, 16, "s49")
a(f"v_and_b32 {T(6)}, 31, {vL}")
a(f"v_lshrrev_b32 {T(7)}, 5, {vL}")
a(f"v_lshl_add_u32 {T(8)}, {T(6)}, 1, {T(7)}")
a("s_movk_i32 s55, 3584")
a(f"v_mul_lo_u32 {v(vOFF+2)}, {T(8)}, s55")
a("s_lshl_b32 s49, s27, 2")
a("s_lshr_b32 s55, s28, 3")
a("s_add_u32 s49, s49, s55")
a("s_lshl_b32 s49, s49, 7")
a("s_and_b32 s55, s28, 7")
a("s_lshl_b32 s55, s55, 4")
a("s_add_u32 s49, s49, s55")
a("s_lshl_b32 s55, s26, 1")
a("s_add_u32 s49, s49, s55")
a("s_lshl_b32 s49, s49, 10")
add64(40, 12, "s49")
a("s_lshl_b32 s49, s29, 3")
a("s_add_u32 s49, s49, s26")
a("s_lshl_b32 s49, s49, 10")
add64(42, 18, "s49")
a(f"v_lshlrev_b32 {v(vOFF+5)}, 2, {vL}")
a(f"v_lshlrev_b32 {v(vOFF+10)}, 7, {T(6)}")
a("s_lshl_b32 s49, s26, 3")
a(f"v_add_u32 {v(vOFF+11)}, s49, {v(vOFF+10)}")
a("s_lshl_b32 s49, s28, 3")
a("s_and_b32 s55, s28, 7")
a("s_add_u32 s49, s49, s55")
a(f"s_lshl_b32 s3, s49, {SH}")
a(f"v_min_u32 {T(11)}, 8, {T(9)}")
a(f"v_lshlrev_b32 {T(12)}, 8, {T(10)}")
a(f"v_lshl_add_u32 {T(12)}, {T(11)}, 4, {T(12)}")
a(f"v_add_u32 {v(vOFF+14)}, {R_O}, {T(12)}")
a(f"v_lshlrev_b32 {T(12)}, 7, {T(10)}")
a(f"v_lshl_add_u32 {v(vOFF+13)}, {T(11)}, 3, {T(12)}")
a(f"v_add_u32 {v(vOFF+15)}, {R_FA}, {v(vOFF+0)}")
a(f"v_lshlrev_b32 {v(vOFF+12)}, 3, {vL}")

a("s_mov_b64 s[16:17], -1")
a("s_cmp_eq_u32 s26, 8")
a("s_cbranch_scc1 L_comm")
a.guard = True
dry_enter(0, ["0", "A1", "A2", "A3", "A4", "A5", "1", "A7"])
a.label("L_dry_done")
a("s_mov_b64 s[16:17], -1")
a("s_mov_b64 exec, -1")
a("s_mov_b32 s26, s18")
a("s_mov_b32 s52, 0")
a("s_cmp_eq_u32 s19, 1")
a("s_cbranch_scc1 L_retB")
a.raw("L_sec0:")
a("s_waitcnt vmcnt(2)")
stamp()
for i in range(4):
    a(f"global_load_dwordx4 {vr(vK+4*i,4)}, {v(vOFF+4)}, s[36:37] offset:{64*i} nt")
a(f"v_readfirstlane_b32 s22, {vE}")
a("s_add_u32 s22, s22, 1")
a("s_xor_b32 s23, s22, 0xa5c3a5c0")
a("s_xor_b32 s15, s23, s14")
a(f"v_mov_b32 {v(vG+2)}, s22")
a(f"v_mov_b32 {v(vG+3)}, s23")
for i in range(4):
    a(f"v_lshlrev_b32 {T(2*i)}, 16, {v(vX+i)}")
    a(f"v_and_b32 {T(2*i+1)}, 0xffff0000, {v(vX+i)}")
a(f"v_add_f32 {T(8)}, {T(0)}, {T(1)}")
a(f"v_add_f32 {T(9)}, {T(2)}, {T(3)}")
a(f"v_add_f32 {T(10)}, {T(4)}, {T(5)}")
a(f"v_add_f32 {T(11)}, {T(6)}, {T(7)}")
a(f"v_add_f32 {T(8)}, {T(8)}, {T(9)}")
a(f"v_add_f32 {T(10)}, {T(10)}, {T(11)}")
a(f"v_add_f32 {T(8)}, {T(8)}, {T(10)}")
sec("A1")
red64("v_add_f32", [T(8)], [T(9)])
a(f"v_mul_f32 {T(8)}, 0x3b000000, {T(8)}")
a(f"v_sub_f32 {T(9)}, {T(0)}, {T(8)}")
a(f"v_mul_f32 {T(10)}, {T(9)}, {T(9)}")
for i in range(1, 8):
    a(f"v_sub_f32 {T(9)}, {T(i)}, {T(8)}")
    a(f"v_fmac_f32 {T(10)}, {T(9)}, {T(9)}")
sec("A2")
red64("v_add_f32", [T(10)], [T(9)])
a(f"v_mul_f32 {T(10)}, 0x3b000000, {T(10)}")
bf16r(T(8), T(8), T(9))
bf16r(T(10), T(10), T(9))
a(f"v_add_f32 {T(10)}, 0x3727c5ac, {T(10)}")
bf16r(T(10), T(10), T(9))
sec("A3")
a(f"v_sqrt_f32 {T(10)}, {T(10)}")
bf16r(T(10), T(10), T(9))
a(f"v_rcp_f32 {T(11)}, {T(10)}")
a(f"v_fma_f32 {T(9)}, -{T(10)}, {T(11)}, 1.0")
a(f"v_fma_f32 {T(11)}, {T(9)}, {T(11)}, {T(11)}")
for i in range(8):
    a(f"v_sub_f32 {T(i)}, {T(i)}, {T(8)}")
for i in range(4):
    a(f"v_cvt_pk_bf16_f32 {T(12+i)}, {T(2*i)}, {T(2*i+1)}")
for i in range(4):
    a(f"v_lshlrev_b32 {T(2*i)}, 16, {T(12+i)}")
    a(f"v_and_b32 {T(2*i+1)}, 0xffff0000, {T(12+i)}")
sec("A4")
for i in range(8):
    a(f"v_mul_f32 {T(i)}, {T(i)}, {T(11)}")
for i in range(4):
    a(f"v_cvt_pk_bf16_f32 {T(12+i)}, {T(2*i)}, {T(2*i+1)}")
a(f"ds_write_b128 {v(vOFF+0)}, {vr(14,4)} offset:{L_XN}")
a(f"v_lshrrev_b32 {T(0)}, 3, {vL}")
a("s_lshr_b32 s49, s28, 3")
a("s_lshl_b32 s49, s49, 6")
a("s_lshl_b32 s55, s26, 3")
a("s_add_u32 s49, s49, s55")
a(f"v_add_lshl_u32 {T(0)}, {T(0)}, s49, 2")
a(f"v_and_b32 {T(1)}, 31, {vL}")
a("s_lshl_b32 s49, s26, 5")
a(f"v_add_lshl_u32 {T(1)}, {T(1)}, s49, 2")
a("s_waitcnt lgkmcnt(0)")
a(f"ds_read_b32 {vXP}, {T(0)} offset:{L_XN}")
a(f"ds_read_b32 {vXH}, {T(1)} offset:{L_XN}")

sec(1)
a("s_waitcnt vmcnt(4) lgkmcnt(0)")
stamp()
QA = [v(vA+i) for i in range(8)]
for c in range(4):
    a(f"v_perm_b32 {T(2*c)}, {v(vWQ+4+c)}, {v(vWQ+c)}, {SEL_LO}")
    a(f"v_perm_b32 {T(2*c+1)}, {v(vWQ+4+c)}, {v(vWQ+c)}, {SEL_HI}")
for i in range(8):
    a(f"v_dot2_f32_bf16 {QA[i]}, {T(i)}, {vXP}, 0")
dppstep("v_add_f32", QA, "row_ror:8")
sec("A5")
swapred("v_add_f32", QA, [T(i) for i in range(8)], 16)
swapred("v_add_f32", QA, [T(i) for i in range(8)], 32)
a(f"v_lshlrev_b32 {T(1)}, 5, {vL}")
a("s_lshl_b32 s49, s26, 8")
a(f"v_add_u32 {T(1)}, s49, {T(1)}")
exec_set(0xff, 0)
a(f"ds_write_b128 {T(1)}, {vr(vA,4)} offset:{L_QP}")
a(f"ds_write_b128 {T(1)}, {vr(vA+4,4)} offset:{L_QP+16}")
exec_all()
a("s_waitcnt lgkmcnt(0)")
a("s_barrier")
stamp()
sec("A7")
a("s_cmp_lg_u32 s26, 0")
a("s_cbranch_scc1 L_noq")
for w in range(8):
    a(f"ds_read_b32 {T(w)}, {v(vOFF+5)} offset:{L_QP+256*w}")
a("s_waitcnt lgkmcnt(0)")
sum8([T(i) for i in range(8)], T(0))
a(f"v_mov_b32_dpp {T(1)}, {T(0)} quad_perm:[1,0,3,2] {DPP}")
a(f"v_cvt_pk_bf16_f32 {T(2)}, {T(0)}, {T(1)}")
a(f"v_lshlrev_b32 {T(3)}, 1, {vL}")
exec_set(0x55555555, 0x55555555)
a(f"ds_write_b32 {T(3)}, {T(2)} offset:{L_QB}")
exec_all()
a(f"v_and_b32 {T(4)}, 15, {vL}")
a(f"v_lshlrev_b32 {T(5)}, 3, {T(4)}")
a("s_waitcnt lgkmcnt(0)")
a(f"ds_read_b64 {vr(vG,2)}, {T(5)} offset:{L_QB}")
a(f"v_add_u32 {T(0)}, s62, {v(vOFF+3)}")
a(f"v_mov_b32 {T(1)}, {T(0)}")
a(f"v_mov_b32 {v(vG+3)}, s15")
a("s_waitcnt lgkmcnt(0)")
for k in range(8):
    if k:
        a(f"v_add_u32 {T(0)}, {4<<CS}, {T(0)}")
    a(f"global_store_dwordx4 {T(0)}, {vr(vG,4)}, s[56:57]")
a.label("L_noq")
stamp()
sec(2)
a("s_barrier")
for k in range(8):
    a(f"global_load_dword {v(vV+k)}, {v(vOFF+5)}, s[38:39] offset:{256*k} nt")
a("s_cmp_lg_u32 s26, 0")
a("s_cbranch_scc1 L_noqa")
for k in range(8):
    if k:
        a(f"v_add_u32 {T(1)}, {4<<CS}, {T(1)}")
    a(f"global_store_dwordx4 {T(1)}, {vr(vG,4)}, s[58:59] sc1")
a("s_nop 1")
a(f"v_mov_b32 {v(vG+3)}, s23")
a.label("L_noqa")
a("s_cbranch_execz L_dry_done")
dry_enter(1, ["B0", "3", "4", "5", "6", "B5", "7", "B7"])
a.label("L_retB")
a("s_cmp_lg_u32 s26, 0")
a("s_cbranch_scc1 L_noqc")
a("s_waitcnt vmcnt(15)")
a("s_branch L_noqb")
a.label("L_noqc")
a("s_waitcnt vmcnt(7)")
a.label("L_noqb")
stamp()
a.raw("L_secB0:")
a("s_barrier")
a("s_barrier")
for k in range(8, 16):
    a(f"global_load_dword {v(vV+k)}, {v(vOFF+5)}, s[38:39] offset:{256*k} nt")
stamp()
a("s_barrier")
for i in range(4):
    a(f"ds_read_b128 {vr(vQ+4*i,4)}, {v(vOFF+4)} offset:{L_QI+64*i}")
a(f"v_mov_b32 {T(0)}, 0")
a(f"ds_read_b32 {T(0)}, {T(0)} offset:{L_MODE}")
a(f"global_load_dwordx4 {vr(vW1,4)}, {v(vOFF+2)}, s[44:45]")
a(f"global_load_dwordx4 {vr(vWO,4)}, {v(vOFF+0)}, s[40:41] nt")
a(f"global_load_dwordx4 {vr(vWO+4,4)}, {v(vOFF+0)}, s[40:41] offset:1024 nt")
a(f"global_load_dwordx4 {vr(vW2,4)}, {v(vOFF+0)}, s[42:43] nt")
stamp()
a("s_waitcnt lgkmcnt(0)")
a(f"v_readfirstlane_b32 s63, {T(0)}")
for i in range(4):
    c = "0" if i == 0 else vr(vD, 4)
    a(f"v_mfma_f32_16x16x32_bf16 {vr(vD,4)}, {vr(vK+4*i,4)}, {vr(vQ+4*i,4)}, {c}")
DD = [v(vD+r) for r in range(4)]
dppstep("v_add_f32", DD, "quad_perm:[1,0,3,2]")
dppstep("v_add_f32", DD, "quad_perm:[2,3,0,1]")
def round4():
    a(f"v_cvt_pk_bf16_f32 {T(0)}, {v(vD)}, {v(vD+1)}")
    a(f"v_cvt_pk_bf16_f32 {T(1)}, {v(vD+2)}, {v(vD+3)}")
    a(f"v_lshlrev_b32 {v(vD)}, 16, {T(0)}")
    a(f"v_and_b32 {v(vD+1)}, 0xffff0000, {T(0)}")
    a(f"v_lshlrev_b32 {v(vD+2)}, 16, {T(1)}")
    a(f"v_and_b32 {v(vD+3)}, 0xffff0000, {T(1)}")
round4()
for r in range(4):
    a(f"v_mul_f32 {v(vD+r)}, s54, {v(vD+r)}")
round4()
a(f"v_max3_f32 {T(2)}, {v(vD)}, {v(vD+1)}, {v(vD+2)}")
a(f"v_max_f32 {T(2)}, {T(2)}, {v(vD+3)}")
swapred("v_max_f32", [T(2)], [T(4)], 16)
swapred("v_max_f32", [T(2)], [T(4)], 32)
for r in range(4):
    a(f"v_sub_f32 {v(vD+r)}, {v(vD+r)}, {T(2)}")
for r in range(4):
    a(f"v_mul_f32 {v(vD+r)}, s53, {v(vD+r)}")
for r in range(4):
    a(f"v_exp_f32 {v(vD+r)}, {v(vD+r)}")
a(f"v_add_f32 {T(3)}, {v(vD)}, {v(vD+1)}")
a(f"v_add_f32 {T(4)}, {v(vD+2)}, {v(vD+3)}")
a(f"v_cvt_pk_bf16_f32 {T(6)}, {v(vD)}, {v(vD+1)}")
a(f"v_cvt_pk_bf16_f32 {T(7)}, {v(vD+2)}, {v(vD+3)}")
a(f"v_add_f32 {T(3)}, {T(3)}, {T(4)}")
swapred("v_add_f32", [T(3)], [T(4)], 16)
swapred("v_add_f32", [T(3)], [T(4)], 32)
for h in range(4):
    for kq in range(4):
        a(f"v_readlane_b32 s{sP0+h*8+2*kq}, {T(6)}, {kq*16+h*4}")
        a(f"v_readlane_b32 s{sP0+h*8+2*kq+1}, {T(7)}, {kq*16+h*4}")
a(f"v_lshlrev_b32 {T(8)}, 1, {vL}")
a("s_lshl_b32 s49, s26, 5")
a(f"v_add_u32 {T(8)}, s49, {T(8)}")
exec_set(0x1111, 0)
a(f"ds_write_b64 {T(8)}, {vr(4,2)} offset:{L_ML}")
exec_all()
sec(3)
OA = [[v(vA+2*h), v(vA+2*h+1)] for h in range(4)]
def pv(t):
    a(f"v_perm_b32 {T(10)}, {v(vV+2*t+1)}, {v(vV+2*t)}, {SEL_LO}")
    a(f"v_perm_b32 {T(11)}, {v(vV+2*t+1)}, {v(vV+2*t)}, {SEL_HI}")
    for h in range(4):
        if t == 0:
            a(f"v_dot2_f32_bf16 {OA[h][0]}, {T(10)}, s{sP0+h*8+t}, 0")
            a(f"v_dot2_f32_bf16 {OA[h][1]}, {T(11)}, s{sP0+h*8+t}, 0")
        else:
            a(f"v_dot2_f32_bf16 {OA[h][0]}, {T(10)}, s{sP0+h*8+t}, {OA[h][0]}")
            a(f"v_dot2_f32_bf16 {OA[h][1]}, {T(11)}, s{sP0+h*8+t}, {OA[h][1]}")
a("s_waitcnt vmcnt(12)")
for t in range(4):
    pv(t)
a("s_waitcnt vmcnt(4)")
stamp()
for t in range(4, 8):
    pv(t)
a("s_lshl_b32 s49, s26, 11")
a(f"v_add_u32 {T(8)}, s49, {v(vOFF+12)}")
for h in range(4):
    a(f"ds_write_b64 {T(8)}, {vr(vA+2*h,2)} offset:{L_O+512*h}")
a("s_waitcnt lgkmcnt(0)")
a("s_barrier")
sec(4)
a("s_lshr_b32 s49, s26, 1")
a("s_lshl_b32 s55, s49, 3")
a(f"v_mov_b32 {T(16)}, s55")
a(f"v_and_b32 {T(15)}, 127, {vTID}")
a(f"v_lshlrev_b32 {T(17)}, 2, {T(15)}")
a("s_lshl_b32 s55, s49, 9")
a(f"v_add_u32 {T(17)}, s55, {T(17)}")
for w in range(8):
    a(f"ds_read_b64 {vr(vK+2*w,2)}, {T(16)} offset:{L_ML+32*w}")
for w in range(8):
    a(f"ds_read_b32 {v(vV+w)}, {T(17)} offset:{L_O+2048*w}")
a("s_lshr_b32 s49, s26, 1")
a(f"s_lshl_b32 s49, s49, {CS+3}")
a("s_lshl_b32 s55, s28, 8")
a("s_add_u32 s49, s49, s55")
a(f"s_add_u32 s49, s49, {R_O}")
a(f"v_lshrrev_b32 {T(8)}, 4, {T(15)}")
a(f"v_lshlrev_b32 {T(8)}, {CS}, {T(8)}")
a(f"v_and_b32 {T(6)}, 15, {T(15)}")
a(f"v_lshlrev_b32 {T(6)}, 3, {T(6)}")
a(f"v_add3_u32 {T(8)}, {T(8)}, {T(6)}, s49")
a(f"v_lshlrev_b32 {T(9)}, {CS}, {T(15)}")
a(f"v_add_u32 {T(9)}, s49, {T(9)}")
a(f"v_mov_b32 {T(4)}, s22")
a(f"v_mov_b32 {T(5)}, s23")
a("s_waitcnt lgkmcnt(0)")
a(f"v_max3_f32 {T(2)}, {v(vK)}, {v(vK+2)}, {v(vK+4)}")
a(f"v_max3_f32 {T(2)}, {T(2)}, {v(vK+6)}, {v(vK+8)}")
a(f"v_max3_f32 {T(2)}, {T(2)}, {v(vK+10)}, {v(vK+12)}")
a(f"v_max_f32 {T(2)}, {T(2)}, {v(vK+14)}")
for w in range(8):
    a(f"v_sub_f32 {v(vK+2*w)}, {v(vK+2*w)}, {T(2)}")
for w in range(8):
    a(f"v_mul_f32 {v(vK+2*w)}, s53, {v(vK+2*w)}")
for w in range(8):
    a(f"v_exp_f32 {v(vK+2*w)}, {v(vK+2*w)}")
a(f"v_mul_f32 {T(3)}, {v(vK)}, {v(vK+1)}")
a(f"v_mul_f32 {v(vG)}, {v(vK)}, {v(vV)}")
for w in range(1, 8):
    a(f"v_fmac_f32 {T(3)}, {v(vK+2*w)}, {v(vK+2*w+1)}")
    a(f"v_fmac_f32 {v(vG)}, {v(vK+2*w)}, {v(vV+w)}")
a(f"v_mov_b32_dpp {v(vG+1)}, {v(vG)} quad_perm:[1,0,3,2] {DPP}")
a(f"v_cmp_gt_u32 vcc, 8, {T(15)}")
a("s_cmp_eq_u32 s63, 0")
a("s_cbranch_scc0 L_oslow")
exec_set(0x55555555, 0x55555555)
a(f"global_store_dwordx4 {T(8)}, {vr(vG,4)}, s[56:57]")
exec_all()
a("s_and_saveexec_b64 s[50:51], vcc")
a("s_cbranch_execz L_opub")
a(f"global_store_dwordx4 {T(9)}, {vr(4,4)}, s[56:57] offset:128")
a("s_branch L_opub")
a.label("L_oslow")
exec_set(0x55555555, 0x55555555)
a(f"global_store_dwordx4 {T(8)}, {vr(vG,4)}, s[58:59] sc1")
exec_all()
a("s_and_saveexec_b64 s[50:51], vcc")
a("s_cbranch_execz L_opub")
a(f"global_store_dwordx4 {T(9)}, {vr(4,4)}, s[58:59] offset:128 sc1")
a.label("L_opub")
exec_all()
stamp()
a("s_waitcnt vmcnt(4)")
HA = [v(vA+8+i) for i in range(4)]
a(f"v_permlane32_swap_b32 {v(vW1+0)}, {v(vW1+2)}")
a(f"v_permlane32_swap_b32 {v(vW1+1)}, {v(vW1+3)}")
for c in range(2):
    a(f"v_perm_b32 {T(2*c)}, {v(vW1+2+c)}, {v(vW1+c)}, {SEL_LO}")
    a(f"v_perm_b32 {T(2*c+1)}, {v(vW1+2+c)}, {v(vW1+c)}, {SEL_HI}")
for i in range(4):
    a(f"v_dot2_f32_bf16 {HA[i]}, {T(i)}, {vXH}, 0")
red32("v_add_f32", HA, [T(i) for i in range(4)])
a(f"v_lshrrev_b32 {T(0)}, 5, {vL}")
a(f"v_lshlrev_b32 {T(2)}, 4, {T(0)}")
a("s_lshl_b32 s49, s26, 5")
a(f"v_add_u32 {T(2)}, s49, {T(2)}")
exec_set(1, 1)
a(f"ds_write_b128 {T(2)}, {vr(vA+8,4)} offset:{L_HP}")
exec_all()
PM, PO = vP, vP + 2
sec(5)
a("s_waitcnt vmcnt(0) lgkmcnt(0)")
a("s_barrier")
a("s_lshl_b32 s55, s26, 2")
a(f"v_mov_b32 {T(14)}, s55")
for w in range(8):
    a(f"ds_read_b32 {v(vV+8+w)}, {T(14)} offset:{L_HP+32*w}")
a(f"ds_read_b64 {vr(PM,2)}, {v(vOFF+10)} offset:{L_OI+64}")
a(f"ds_read_b64 {vr(PO,2)}, {v(vOFF+11)} offset:{L_OI}")
a("s_waitcnt lgkmcnt(0)")
sum8([v(vV+8+i) for i in range(8)], T(16))
bf16r(T(16), T(16), T(17))
a(f"v_max_f32 {T(16)}, 0, {T(16)}")
a(f"v_and_b32 {T(16)}, s48, {T(16)}")
a(f"v_mov_b32 {T(0)}, {v(PM)}")
red32("v_max_f32", [T(0)], [T(1)])
a(f"v_sub_f32 {T(0)}, {v(PM)}, {T(0)}")
a(f"v_mul_f32 {T(0)}, s53, {T(0)}")
a(f"v_exp_f32 {T(0)}, {T(0)}")
a(f"v_mul_f32 {T(1)}, {T(0)}, {v(PM+1)}")
a(f"v_mul_f32 {T(2)}, {T(0)}, {v(PO)}")
a(f"v_mul_f32 {T(3)}, {T(0)}, {v(PO+1)}")
red32("v_add_f32", [T(1), T(2), T(3)], [T(4), T(5), T(6)])
a(f"v_rcp_f32 {T(4)}, {T(1)}")
a(f"v_fma_f32 {T(5)}, -{T(1)}, {T(4)}, 1.0")
a(f"v_fma_f32 {T(4)}, {T(5)}, {T(4)}, {T(4)}")
a(f"v_mul_f32 {T(2)}, {T(2)}, {T(4)}")
a(f"v_mul_f32 {T(3)}, {T(3)}, {T(4)}")
a(f"v_cvt_pk_bf16_f32 {T(0)}, {T(2)}, {T(3)}")
for c in range(4):
    a(f"v_perm_b32 {T(2+2*c)}, {v(vWO+4+c)}, {v(vWO+c)}, {SEL_LO}")
    a(f"v_perm_b32 {T(3+2*c)}, {v(vWO+4+c)}, {v(vWO+c)}, {SEL_HI}")
for i in range(8):
    a(f"v_dot2_f32_bf16 {v(vA+i)}, {T(2+i)}, {T(0)}, 0")
for c in range(4):
    a(f"v_lshlrev_b32 {v(vA+8+2*c)}, 16, {v(vW2+c)}")
    a(f"v_and_b32 {v(vA+9+2*c)}, 0xffff0000, {v(vW2+c)}")
for i in range(8):
    a(f"v_mul_f32 {v(vA+8+i)}, {v(vA+8+i)}, {T(16)}")
a(f"v_lshlrev_b32 {T(10)}, 5, {vL}")
a("s_lshl_b32 s49, s26, 12")
a(f"v_add_u32 {T(10)}, s49, {T(10)}")
a(f"ds_write_b128 {T(10)}, {vr(vA,4)} offset:{L_AB}")
a(f"ds_write_b128 {T(10)}, {vr(vA+4,4)} offset:{L_AB+16}")
a(f"ds_write_b128 {T(10)}, {vr(vA+8,4)} offset:{L_AB+2048}")
a(f"ds_write_b128 {T(10)}, {vr(vA+12,4)} offset:{L_AB+2048+16}")
a("s_waitcnt lgkmcnt(0)")
a("s_barrier")
a(f"v_lshlrev_b32 {T(16)}, 2, {vTID}")
for w in range(8):
    a(f"ds_read_b32 {v(vK+w)}, {T(16)} offset:{L_AB+4096*w}")
    a(f"ds_read_b32 {v(vK+8+w)}, {T(16)} offset:{L_AB+4096*w+2048}")
a(f"v_lshrrev_b32 {T(6)}, 4, {vTID}")
a(f"v_lshlrev_b32 {T(6)}, {CS}, {T(6)}")
a(f"v_and_b32 {T(7)}, 15, {vTID}")
a(f"v_lshlrev_b32 {T(7)}, 4, {T(7)}")
a("s_lshl_b32 s49, s28, 8")
a(f"s_add_u32 s49, s49, {R_FA}")
a(f"v_add3_u32 {T(6)}, {T(6)}, {T(7)}, s49")
a("s_waitcnt lgkmcnt(0)")
sum8([v(vK+i) for i in range(8)], v(vG))
sum8([v(vK+8+i) for i in range(8)], v(vG+1))
a("s_cmp_eq_u32 s63, 0")
a("s_cbranch_scc0 L_faslow")
a(f"global_store_dwordx4 {T(6)}, {vr(vG,4)}, s[56:57]")
a("s_branch L_fapub")
a.label("L_faslow")
a(f"global_store_dwordx4 {T(6)}, {vr(vG,4)}, s[58:59] sc1")
a.label("L_fapub")
if STAMPS:
    a("s_cmp_lg_u32 s26, 0")
    a("s_cbranch_scc1 L_end")
    stamp()
    a(f"v_writelane_b32 {vST}, s52, 31")
    a("s_lshl_b32 s49, s2, 7")
    a(f"s_add_u32 s49, s49, {STAMP_OFF+0x100000:#x}")
    a(f"v_add_u32 {T(10)}, s49, {v(vOFF+5)}")
    exec_set(0xffffffff, 0)
    a(f"global_store_dword {T(10)}, {vST}, s[24:25]")
    exec_all()
a("s_cbranch_execz L_dry_done")
a("s_branch L_end")
a.label("L_comm")
a.raw("L_sec6:")
for i in range(4):
    a(f"v_mov_b32 {T(12+i)}, 0")
a("s_lshl_b32 s49, s28, 8")
a(f"s_add_u32 s50, s49, {R_O}")
a(f"s_add_u32 s51, s49, {R_FA}")
def prestore(sreg):
    a(f"v_add_u32 {T(11)}, {sreg}, {v(vOFF+3)}")
    for k in range(8):
        if k:
            a(f"v_add_u32 {T(11)}, {4<<CS}, {T(11)}")
        a(f"global_store_dwordx4 {T(11)}, {vr(14,4)}, s[56:57]")
a("s_waitcnt vmcnt(0)")
a(f"v_readfirstlane_b32 s22, {vE}")
a("s_add_u32 s22, s22, 1")
a("s_xor_b32 s23, s22, 0xa5c3a5c0")
a("s_xor_b32 s15, s23, s14")
a(f"v_mov_b32 {v(vG+2)}, s22")
a(f"v_mov_b32 {v(vG+3)}, s23")
stamp()
a("s_barrier")
a("s_barrier")
prestore("s50")
prestore("s51")
a("s_barrier")
inbox_loads(v(vOFF+0), 8)
a("s_barrier")
a("s_waitcnt vmcnt(0)")
stamp()
sec("B5")
poll_loop("q", v(vOFF+0), 8, first_issued=True, tagcheck=tagcheck_q)
for k in range(8):
    a(f"ds_write_b64 {v(vOFF+12)}, {vr(vP+4*k,2)} offset:{L_QI+512*k}")
a(f"v_cmp_ne_u32 vcc, 0, {T(3)}")
a("s_cmp_eq_u64 vcc, 0")
a("s_cselect_b32 s63, 0, 1")
a(f"v_mov_b32 {T(0)}, 0")
a(f"v_mov_b32 {T(1)}, s63")
a(f"ds_write_b32 {T(0)}, {T(1)} offset:{L_MODE}")
a("s_cmp_eq_u32 s63, 0")
a("s_cselect_b32 s64, s30, s34")
a("s_cselect_b32 s65, s31, s35")
a("s_cselect_b32 s66, s32, s60")
a("s_cselect_b32 s67, s33, s61")
a("s_waitcnt lgkmcnt(0)")
stamp()
a("s_barrier")
sec(7)
a("s_barrier")
stamp()
SELB[0] = True
poll_loop("o", v(vOFF+14), 8, dual=False)
for k in range(8):
    a(f"ds_write_b64 {v(vOFF+13)}, {vr(vP+4*k,2)} offset:{L_OI+512*k}")
a("s_waitcnt lgkmcnt(0)")
stamp()
a("s_barrier")
a("s_barrier")
stamp()
sec("B7")
poll_loop("fa", v(vOFF+15), 8, dual=False)
SELB[0] = False
stamp()
for c in range(2):
    sum8([v(vP+4*k+c) for k in range(8)], v(vG+c))
GG = [v(vG), v(vG+1)]
swapred("v_add_f32", GG, [T(0), T(1)], 16)
swapred("v_add_f32", GG, [T(0), T(1)], 32)
a("s_lshl_b32 s49, s27, 8")
a("s_add_u32 s49, s49, s3")
a(f"s_add_u32 s49, s49, {R_FB}")
a(f"v_add_u32 {T(0)}, s49, {v(vOFF+0)}")
exec_set(0xffff, 0)
a(f"global_store_dwordx4 {T(0)}, {vr(vG,4)}, s[24:25] sc1")
exec_all()
a("s_and_b32 s49, s28, 7")
a("s_cmp_lg_u32 s49, s27")
a("s_cbranch_scc1 L_fin")
a(f"v_lshlrev_b32 {T(10)}, 1, {vL}")
a("s_lshl_b32 s49, s28, 5")
a(f"v_add_u32 {T(10)}, s49, {T(10)}")
exec_set(0xffff, 0)
a(f"global_load_ushort {T(12)}, {T(10)}, s[4:5]")
exec_all()
a(f"v_add_u32 {T(11)}, {R_FB}, {v(vOFF+0)}")
poll_loop("fb", T(11), 2, dual=False)
a(f"v_add_f32 {v(vG)}, {v(vP)}, {v(vP+4)}")
a(f"v_add_f32 {v(vG+1)}, {v(vP+1)}, {v(vP+5)}")
swapred("v_add_f32", GG, [T(0), T(1)], 16)
swapred("v_add_f32", GG, [T(0), T(1)], 32)
a(f"v_cvt_pk_bf16_f32 {T(0)}, {v(vG)}, {v(vG+1)}")
a(f"v_lshlrev_b32 {T(1)}, 16, {T(0)}")
a(f"v_and_b32 {T(2)}, 0xffff0000, {T(0)}")
a(f"v_lshlrev_b32 {T(3)}, 16, {T(12)}")
a(f"v_add_f32 {T(1)}, {T(1)}, {T(3)}")
bf16r(T(1), T(1), T(4))
a(f"v_add_f32 {T(1)}, {T(1)}, {T(2)}")
a(f"v_cvt_pk_bf16_f32 {T(0)}, {T(1)}, {T(1)}")
exec_set(0xffff, 0)
a(f"global_store_short {T(10)}, {T(0)}, s[20:21]")
exec_all()
a("s_cmp_lg_u32 s2, 0")
a("s_cbranch_scc1 L_fin")
a(f"v_mov_b32 {T(1)}, {EPOCH:#x}")
a(f"v_mov_b32 {T(2)}, s22")
exec_set(1, 0)
a(f"global_store_dword {T(1)}, {T(2)}, s[24:25]")
exec_all()
a.label("L_fin")
a("s_cbranch_execz L_dry_done")
def stamp_store(extra):
    a(f"v_writelane_b32 {vST}, s52, 31")
    a("s_lshl_b32 s49, s2, 7")
    a(f"s_add_u32 s49, s49, {STAMP_OFF+extra:#x}")
    a(f"v_add_u32 {T(10)}, s49, {v(vOFF+5)}")
    exec_set(0xffffffff, 0)
    a(f"global_store_dword {T(10)}, {vST}, s[24:25]")
    exec_all()
if STAMPS:
    stamp()
    stamp_store(0)
a.label("L_end")
a("s_endpgm")
a.raw(f""".section .rodata,"a"
.p2align 6
.amdhsa_kernel {NAME}_kernel
  .amdhsa_next_free_vgpr {NVGPR}
  .amdhsa_next_free_sgpr 102
  .amdhsa_accum_offset {NVGPR}
  .amdhsa_group_segment_fixed_size 0
  .amdhsa_kernarg_size 88
  .amdhsa_user_sgpr_count 2
  .amdhsa_user_sgpr_kernarg_segment_ptr 1
  .amdhsa_system_sgpr_workgroup_id_x 1
  .amdhsa_float_denorm_mode_32 3
  .amdhsa_float_denorm_mode_16_64 3
.end_amdhsa_kernel""")

out = sys.argv[1]
open(out, "w").write(a.text())
```

```python
import sys
from asmlib import Asm

NAME = "parallel_sum__sliding_block_cached__dense_activation_relu__decode"
STAMPS = "--stamps" in sys.argv
STW = 7 if "--w7" in sys.argv else 0
N1 = 8
SPIN_CAP = 400000

L_XN = 0
L_QP = 1024
L_QB = 3072
L_MODE = 3200
L_HP = 3328
L_ML = 3584
L_O = 4096
L_AB = 20480
L_QI = 53248
L_OI = 57344
LDS_BYTES = 90112

R_Q = 0
R_O = 8192
R_FA = 16384
R_FB = 24576
R_B = 32768
SH = 16
CS = SH + 3
STAMP_OFF = 20 << 20
EPOCH = 24 << 20

a = Asm()

vTID, vL = "v0", "v1"
def T(i): return f"v{2+i}"
vX = 20
vST = "v24"
vXP = "v25"
vWQ = 28
vW1 = 36
vK = 40
vV = 56
vWO = 72
vW2 = 80
vQ = 84
vD = 100
vA = 104
vOFF = 120
vP = 40
vXH = "v26"
vE = "v27"
vG = 136
NVGPR = 140
def v(i): return f"v{i}"
def vr(i, n): return f"v[{i}:{i+n-1}]"

SEL_LO, SEL_HI = "s46", "s47"
sP0 = 68
nstamp = [0]
def stamp():
    if not STAMPS: return
    i = nstamp[0]; nstamp[0] += 1
    a("s_memrealtime s[100:101]")
    a("s_waitcnt lgkmcnt(0)")
    a(f"v_writelane_b32 {vST}, s100, {i}")

DPP = "row_mask:0xf bank_mask:0xf"
def dppstep(op, regs, pat):
    for r in regs:
        a(f"{op}_dpp {r}, {r}, {r} {pat} {DPP}")
def red16(op, regs):
    for pat in ("quad_perm:[1,0,3,2]", "quad_perm:[2,3,0,1]", "row_half_mirror", "row_mirror"):
        dppstep(op, regs, pat)
def swapred(op, regs, tmps, which):
    for r, t in zip(regs, tmps):
        a(f"v_mov_b32 {t}, {r}")
    for r, t in zip(regs, tmps):
        a(f"v_permlane{which}_swap_b32 {r}, {t}")
    for r, t in zip(regs, tmps):
        a(f"{op} {r}, {r}, {t}")
def red32(op, regs, tmps):
    red16(op, regs); swapred(op, regs, tmps, 16)
def red64(op, regs, tmps):
    red32(op, regs, tmps); swapred(op, regs, tmps, 32)
def bf16r(dst, src, tmp):
    a(f"v_cvt_pk_bf16_f32 {tmp}, {src}, {src}")
    a(f"v_lshlrev_b32 {dst}, 16, {tmp}")
def exec_set(lo, hi):
    a(f"s_and_b32 exec_lo, s16, {lo:#x}")
    a(f"s_and_b32 exec_hi, s17, {hi:#x}")
def exec_all():
    a("s_mov_b64 exec, s[16:17]")
def sec(k):
    a("s_cbranch_execz L_dry_done")
    a._close()
    a.raw(f"L_sec{k}:")
def dry_enter(which, names):
    a(f"s_mov_b32 s19, {which}")
    a("s_mov_b32 s18, s26")
    a("s_mov_b64 s[16:17], 0")
    a("s_mov_b64 exec, 0")
    a("s_mov_b32 s26, 0")
    for k in range(1, 8):
        a(f"s_cmp_eq_u32 s18, {k}")
        a(f"s_cbranch_scc1 L_sec{names[k]}")
    a(f"s_branch L_sec{names[0]}")
def add64(dst, base, off):
    a(f"s_add_u32 s{dst}, s{base}, {off}")
    a(f"s_addc_u32 s{dst+1}, s{base+1}, 0")
def sum8(regs, dst):
    r = regs
    a(f"v_add_f32 {r[0]}, {r[0]}, {r[1]}")
    a(f"v_add_f32 {r[2]}, {r[2]}, {r[3]}")
    a(f"v_add_f32 {r[4]}, {r[4]}, {r[5]}")
    a(f"v_add_f32 {r[6]}, {r[6]}, {r[7]}")
    a(f"v_add_f32 {r[0]}, {r[0]}, {r[2]}")
    a(f"v_add_f32 {r[4]}, {r[4]}, {r[6]}")
    a(f"v_add_f32 {dst}, {r[0]}, {r[4]}")
SELB = [False]
QSH = [False]
def inbox_loads(offreg, n, b=False):
    if QSH[0]:
        base = "s[58:59]" if b else "s[56:57]"
        for k in range(n):
            off = v(vOFF+0) if k < 4 else v(vOFF+6)
            a(f"global_load_dwordx4 {vr(vP+4*k,4)}, {off}, {base} offset:{1024*(k%4)} sc1")
        return
    lo, hi = ("s[34:35]", "s[60:61]") if b else ("s[30:31]", "s[32:33]")
    if SELB[0]:
        lo, hi = "s[64:65]", "s[66:67]"
    for k in range(n):
        base = lo if k < 4 else hi
        a(f"global_load_dwordx4 {vr(vP+4*k,4)}, {offreg}, {base} offset:{1024*(k%4)} sc1")
def tagcheck(n):
    a(f"v_xor_b32 {T(0)}, s22, {v(vP+2)}")
    a(f"v_xor_b32 {T(1)}, s23, {v(vP+3)}")
    a(f"v_or_b32 {T(0)}, {T(0)}, {T(1)}")
    for k in range(1, n):
        a(f"v_xor_b32 {T(1)}, s22, {v(vP+4*k+2)}")
        a(f"v_xor_b32 {T(2)}, s23, {v(vP+4*k+3)}")
        a(f"v_or3_b32 {T(0)}, {T(0)}, {T(1)}, {T(2)}")
    a(f"v_cmp_ne_u32 vcc, 0, {T(0)}")
    a("s_cmp_eq_u64 vcc, 0")
def tagcheck_q(n):
    for k in range(n):
        a(f"v_xor_b32 {T(1)}, s22, {v(vP+4*k+2)}")
        a(f"v_xor_b32 {T(2)}, s15, {v(vP+4*k+3)}")
        if k == 0:
            a(f"v_mov_b32 {T(3)}, {T(2)}")
            a(f"v_mov_b32 {T(0)}, {T(1)}")
        else:
            a(f"v_or_b32 {T(3)}, {T(3)}, {T(2)}")
            a(f"v_or_b32 {T(0)}, {T(0)}, {T(1)}")
    a(f"v_and_b32 {T(2)}, -8, {T(3)}")
    a(f"v_or_b32 {T(0)}, {T(0)}, {T(2)}")
    a(f"v_cmp_ne_u32 vcc, 0, {T(0)}")
    a("s_cmp_eq_u64 vcc, 0")
def spin_guard():
    a("s_add_u32 s52, s52, 1")
    a(f"s_cmp_gt_u32 s52, {SPIN_CAP}")
    a("s_cbranch_scc1 L_end")
def poll_loop(name, offreg, n, first_issued=False, dual=True, tagcheck=tagcheck):
    if first_issued:
        tagcheck(n)
        a(f"s_cbranch_scc1 L_{name}_ok")
    a.label(f"L_{name}_loop")
    inbox_loads(offreg, n)
    spin_guard()
    a("s_waitcnt vmcnt(0)")
    tagcheck(n)
    if not dual:
        a(f"s_cbranch_scc0 L_{name}_loop")
    else:
        a(f"s_cbranch_scc1 L_{name}_ok")
        a("s_and_b32 s49, s52, 3")
        a("s_cmp_lg_u32 s49, 3")
        a(f"s_cbranch_scc1 L_{name}_loop")
        inbox_loads(offreg, n, b=True)
        a("s_waitcnt vmcnt(0)")
        tagcheck(n)
        a(f"s_cbranch_scc0 L_{name}_loop")
    a.label(f"L_{name}_ok")

a.raw(f"""; Kernarg layout: x, k_cache, v_cache, wq, wo, B_x, w1, w2, out, debug, ws (8-byte pointers)
; @launch grid=(256,1,1) block=(576,1,1) lds={LDS_BYTES}
.amdgcn_target "amdgcn-amd-amdhsa--gfx950"
.text
.globl {NAME}_kernel
.p2align 8
.type {NAME}_kernel,@function
{NAME}_kernel:""")

a("s_cmp_ge_u32 s2, 256")
a("s_cbranch_scc1 L_end")
a("s_load_dwordx16 s[4:19], s[0:1], 0")
a("s_load_dwordx4 s[20:23], s[0:1], 64")
a("s_load_dwordx2 s[24:25], s[0:1], 80")
stamp()
a(f"v_and_b32 {vL}, 63, {vTID}")
a(f"v_lshrrev_b32 {T(0)}, 6, {vTID}")
a(f"v_readfirstlane_b32 s26, {T(0)}")
a("s_and_b32 s27, s2, 7")
a("s_lshr_b32 s28, s2, 3")
a(f"v_lshlrev_b32 {v(vOFF+0)}, 4, {vL}")
a(f"v_lshrrev_b32 {T(6)}, 3, {vL}")
a(f"v_and_b32 {T(7)}, 7, {vL}")
a(f"v_lshlrev_b32 {v(vOFF+1)}, 14, {T(6)}")
a(f"v_lshl_add_u32 {v(vOFF+1)}, {T(7)}, 4, {v(vOFF+1)}")
a(f"v_mov_b32 {T(8)}, {EPOCH:#x}")
a(f"v_and_b32 {T(9)}, 15, {vL}")
a(f"v_lshrrev_b32 {T(10)}, 4, {vL}")
a(f"v_lshlrev_b32 {v(vOFF+3)}, {CS}, {T(10)}")
a(f"v_lshl_add_u32 {v(vOFF+3)}, {T(9)}, 4, {v(vOFF+3)}")
a("s_and_b32 s49, s28, 7")
a("s_lshr_b32 s49, s49, 1")
a("s_lshl_b32 s49, s49, 2")
a("s_lshr_b32 s55, s28, 3")
a("s_add_u32 s49, s49, s55")
a("s_lshl_b32 s49, s49, 9")
a("s_and_b32 s55, s28, 1")
a("s_lshl_b32 s55, s55, 8")
a("s_add_u32 s62, s49, s55")
a("s_lshr_b32 s49, s28, 3")
a("s_lshl_b32 s49, s49, 7")
a("s_lshl_b32 s55, s26, 4")
a("s_add_u32 s49, s49, s55")
a("s_lshl_b32 s49, s49, 13")
a("s_lshl_b32 s55, s27, 10")
a("s_add_u32 s49, s49, s55")
a("s_and_b32 s55, s28, 7")
a("s_lshl_b32 s55, s55, 7")
a("s_add_u32 s49, s49, s55")
a(f"s_lshl_b32 s55, s27, {SH}")
a("s_waitcnt lgkmcnt(0)")
a("s_getreg_b32 s14, hwreg(HW_REG_XCC_ID, 0, 3)")
add64(56, 24, "s55")
add64(64, 10, "s49")
add64(66, 64, 8192)
a(f"global_load_dword {vE}, {T(8)}, s[24:25]")
a("s_cmp_eq_u32 s26, 8")
a("s_cbranch_scc1 L_nold")
a(f"global_load_dwordx4 {vr(vX,4)}, {v(vOFF+0)}, s[4:5]")
a(f"global_load_dwordx4 {vr(vWQ,4)}, {v(vOFF+1)}, s[64:65] nt")
a(f"global_load_dwordx4 {vr(vWQ+4,4)}, {v(vOFF+1)}, s[66:67] nt")
a.label("L_nold")
a(f"v_lshlrev_b32 {v(vOFF+4)}, 8, {T(9)}")
a(f"v_lshl_add_u32 {v(vOFF+4)}, {T(10)}, 4, {v(vOFF+4)}")
a("s_lshl_b32 s50, s27, 24")
a("s_add_u32 s50, s50, 0xf00000")
a("s_lshl_b32 s55, s28, 15")
a("s_add_u32 s50, s50, s55")
a("s_lshl_b32 s55, s26, 12")
a("s_add_u32 s50, s50, s55")
add64(36, 6, "s50")
add64(38, 8, "s50")
add64(58, 56, R_B)
a(f"s_mov_b32 {SEL_LO}, 0x05040100")
a(f"s_mov_b32 {SEL_HI}, 0x07060302")
a("s_mov_b32 s53, 0x3fb8aa3b")
a("s_mov_b32 s54, 0x3db504f3")
a("s_mov_b32 s52, 0")
a("s_mul_i32 s29, s27, 28")
a("s_add_u32 s29, s29, s28")
a("s_cmp_lt_u32 s28, 28")
a("s_cselect_b32 s29, s29, 0")
a("s_cselect_b32 s48, -1, 0")
a(f"s_lshl_b32 s49, s2, {SH}")
add64(30, 24, "s49")
add64(32, 30, 4096)
add64(34, 30, R_B)
add64(60, 30, R_B + 4096)
a("s_mul_i32 s49, s26, 229376")
a("s_lshl_b32 s55, s29, 4")
a("s_add_u32 s49, s49, s55")
add64(44, 16, "s49")
a(f"v_and_b32 {T(6)}, 31, {vL}")
a(f"v_lshrrev_b32 {T(7)}, 5, {vL}")
a(f"v_lshl_add_u32 {T(8)}, {T(6)}, 1, {T(7)}")
a("s_movk_i32 s55, 3584")
a(f"v_mul_lo_u32 {v(vOFF+2)}, {T(8)}, s55")
a("s_lshl_b32 s49, s27, 2")
a("s_lshr_b32 s55, s28, 3")
a("s_add_u32 s49, s49, s55")
a("s_lshl_b32 s49, s49, 7")
a("s_and_b32 s55, s28, 7")
a("s_lshl_b32 s55, s55, 4")
a("s_add_u32 s49, s49, s55")
a("s_lshl_b32 s55, s26, 1")
a("s_add_u32 s49, s49, s55")
a("s_lshl_b32 s49, s49, 10")
add64(40, 12, "s49")
a("s_lshl_b32 s49, s29, 3")
a("s_add_u32 s49, s49, s26")
a("s_lshl_b32 s49, s49, 10")
add64(42, 18, "s49")
a(f"v_lshlrev_b32 {v(vOFF+5)}, 2, {vL}")
a(f"v_lshlrev_b32 {v(vOFF+10)}, 7, {T(6)}")
a("s_lshl_b32 s49, s26, 3")
a(f"v_add_u32 {v(vOFF+11)}, s49, {v(vOFF+10)}")
a("s_lshl_b32 s49, s28, 3")
a("s_and_b32 s55, s28, 7")
a("s_add_u32 s49, s49, s55")
a(f"s_lshl_b32 s3, s49, {SH}")
a(f"v_min_u32 {T(11)}, 8, {T(9)}")
a(f"v_lshlrev_b32 {T(12)}, 8, {T(10)}")
a(f"v_lshl_add_u32 {T(12)}, {T(11)}, 4, {T(12)}")
a(f"v_add_u32 {v(vOFF+14)}, {R_O}, {T(12)}")
a(f"v_lshlrev_b32 {T(12)}, 7, {T(10)}")
a(f"v_lshl_add_u32 {v(vOFF+13)}, {T(11)}, 3, {T(12)}")
a(f"v_add_u32 {v(vOFF+15)}, {R_FA}, {v(vOFF+0)}")
a(f"v_lshlrev_b32 {v(vOFF+12)}, 3, {vL}")
a(f"v_add_u32 {v(vOFF+6)}, 4096, {v(vOFF+0)}")

a("s_mov_b64 s[16:17], -1")
a("s_cmp_eq_u32 s26, 8")
a("s_cbranch_scc1 L_comm")
a.guard = True
dry_enter(0, ["0", "A1", "A2", "A3", "A4", "A5", "1", "A7"])
a.label("L_dry_done")
a("s_mov_b64 s[16:17], -1")
a("s_mov_b64 exec, -1")
a("s_mov_b32 s26, s18")
a("s_mov_b32 s52, 0")
a("s_cmp_eq_u32 s19, 1")
a("s_cbranch_scc1 L_retB")
a.raw("L_sec0:")
a("s_waitcnt vmcnt(2)")
stamp()
for i in range(4):
    a(f"global_load_dwordx4 {vr(vK+4*i,4)}, {v(vOFF+4)}, s[36:37] offset:{64*i} nt")
for k in range(8):
    a(f"global_load_dword {v(vV+k)}, {v(vOFF+5)}, s[38:39] offset:{256*k} nt")
a(f"v_readfirstlane_b32 s22, {vE}")
a("s_add_u32 s22, s22, 1")
a("s_xor_b32 s23, s22, 0xa5c3a5c0")
a("s_xor_b32 s15, s23, s14")
a(f"v_mov_b32 {v(vG+2)}, s22")
a(f"v_mov_b32 {v(vG+3)}, s23")
for i in range(4):
    a(f"v_lshlrev_b32 {T(2*i)}, 16, {v(vX+i)}")
    a(f"v_and_b32 {T(2*i+1)}, 0xffff0000, {v(vX+i)}")
a(f"v_add_f32 {T(8)}, {T(0)}, {T(1)}")
a(f"v_add_f32 {T(9)}, {T(2)}, {T(3)}")
a(f"v_add_f32 {T(10)}, {T(4)}, {T(5)}")
a(f"v_add_f32 {T(11)}, {T(6)}, {T(7)}")
a(f"v_add_f32 {T(8)}, {T(8)}, {T(9)}")
a(f"v_add_f32 {T(10)}, {T(10)}, {T(11)}")
a(f"v_add_f32 {T(8)}, {T(8)}, {T(10)}")
sec("A1")
red64("v_add_f32", [T(8)], [T(9)])
a(f"v_mul_f32 {T(8)}, 0x3b000000, {T(8)}")
a(f"v_sub_f32 {T(9)}, {T(0)}, {T(8)}")
a(f"v_mul_f32 {T(10)}, {T(9)}, {T(9)}")
for i in range(1, 8):
    a(f"v_sub_f32 {T(9)}, {T(i)}, {T(8)}")
    a(f"v_fmac_f32 {T(10)}, {T(9)}, {T(9)}")
sec("A2")
red64("v_add_f32", [T(10)], [T(9)])
a(f"v_mul_f32 {T(10)}, 0x3b000000, {T(10)}")
bf16r(T(8), T(8), T(9))
bf16r(T(10), T(10), T(9))
a(f"v_add_f32 {T(10)}, 0x3727c5ac, {T(10)}")
bf16r(T(10), T(10), T(9))
sec("A3")
a(f"v_sqrt_f32 {T(10)}, {T(10)}")
bf16r(T(10), T(10), T(9))
a(f"v_rcp_f32 {T(11)}, {T(10)}")
a(f"v_fma_f32 {T(9)}, -{T(10)}, {T(11)}, 1.0")
a(f"v_fma_f32 {T(11)}, {T(9)}, {T(11)}, {T(11)}")
for i in range(8):
    a(f"v_sub_f32 {T(i)}, {T(i)}, {T(8)}")
for i in range(4):
    a(f"v_cvt_pk_bf16_f32 {T(12+i)}, {T(2*i)}, {T(2*i+1)}")
for i in range(4):
    a(f"v_lshlrev_b32 {T(2*i)}, 16, {T(12+i)}")
    a(f"v_and_b32 {T(2*i+1)}, 0xffff0000, {T(12+i)}")
sec("A4")
for i in range(8):
    a(f"v_mul_f32 {T(i)}, {T(i)}, {T(11)}")
for i in range(4):
    a(f"v_cvt_pk_bf16_f32 {T(12+i)}, {T(2*i)}, {T(2*i+1)}")
a(f"ds_write_b128 {v(vOFF+0)}, {vr(14,4)} offset:{L_XN}")
a(f"v_lshrrev_b32 {T(0)}, 3, {vL}")
a("s_lshr_b32 s49, s28, 3")
a("s_lshl_b32 s49, s49, 6")
a("s_lshl_b32 s55, s26, 3")
a("s_add_u32 s49, s49, s55")
a(f"v_add_lshl_u32 {T(0)}, {T(0)}, s49, 2")
a(f"v_and_b32 {T(1)}, 31, {vL}")
a("s_lshl_b32 s49, s26, 5")
a(f"v_add_lshl_u32 {T(1)}, {T(1)}, s49, 2")
a("s_waitcnt lgkmcnt(0)")
a(f"ds_read_b32 {vXP}, {T(0)} offset:{L_XN}")
a(f"ds_read_b32 {vXH}, {T(1)} offset:{L_XN}")

sec(1)
a("s_waitcnt vmcnt(12) lgkmcnt(0)")
stamp()
QA = [v(vA+i) for i in range(8)]
for c in range(4):
    a(f"v_perm_b32 {T(2*c)}, {v(vWQ+4+c)}, {v(vWQ+c)}, {SEL_LO}")
    a(f"v_perm_b32 {T(2*c+1)}, {v(vWQ+4+c)}, {v(vWQ+c)}, {SEL_HI}")
for i in range(8):
    a(f"v_dot2_f32_bf16 {QA[i]}, {T(i)}, {vXP}, 0")
dppstep("v_add_f32", QA, "row_ror:8")
sec("A5")
swapred("v_add_f32", QA, [T(i) for i in range(8)], 16)
swapred("v_add_f32", QA, [T(i) for i in range(8)], 32)
a(f"v_lshlrev_b32 {T(1)}, 5, {vL}")
a("s_lshl_b32 s49, s26, 8")
a(f"v_add_u32 {T(1)}, s49, {T(1)}")
exec_set(0xff, 0)
a(f"ds_write_b128 {T(1)}, {vr(vA,4)} offset:{L_QP}")
a(f"ds_write_b128 {T(1)}, {vr(vA+4,4)} offset:{L_QP+16}")
exec_all()
a("s_waitcnt lgkmcnt(0)")
a("s_barrier")
stamp()
sec("A7")
a("s_cmp_lg_u32 s26, 0")
a("s_cbranch_scc1 L_noq")
for w in range(8):
    a(f"ds_read_b32 {T(w)}, {v(vOFF+5)} offset:{L_QP+256*w}")
a("s_waitcnt lgkmcnt(0)")
sum8([T(i) for i in range(8)], T(0))
a(f"v_mov_b32_dpp {T(1)}, {T(0)} quad_perm:[1,0,3,2] {DPP}")
a(f"v_cvt_pk_bf16_f32 {T(2)}, {T(0)}, {T(1)}")
a(f"v_lshlrev_b32 {T(3)}, 1, {vL}")
exec_set(0x55555555, 0x55555555)
a(f"ds_write_b32 {T(3)}, {T(2)} offset:{L_QB}")
exec_all()
a(f"v_and_b32 {T(4)}, 15, {vL}")
a(f"v_lshlrev_b32 {T(5)}, 3, {T(4)}")
a("s_waitcnt lgkmcnt(0)")
a(f"ds_read_b64 {vr(vG,2)}, {T(5)} offset:{L_QB}")
a(f"v_add_u32 {T(1)}, s62, {v(vOFF+0)}")
a(f"v_mov_b32 {v(vG+3)}, s15")
a("s_waitcnt lgkmcnt(0)")
exec_set(0xffff, 0)
a(f"global_store_dwordx4 {T(1)}, {vr(vG,4)}, s[56:57]")
exec_all()
a.label("L_noq")
stamp()
sec(2)
a("s_barrier")
for k in range(8, 16):
    a(f"global_load_dword {v(vV+k)}, {v(vOFF+5)}, s[38:39] offset:{256*k} nt")
a("s_cmp_lg_u32 s26, 0")
a("s_cbranch_scc1 L_noqa")
exec_set(0xffff, 0)
a(f"global_store_dwordx4 {T(1)}, {vr(vG,4)}, s[58:59] sc1")
exec_all()
a("s_nop 1")
a(f"v_mov_b32 {v(vG+3)}, s23")
a.label("L_noqa")
a("s_cbranch_execz L_dry_done")
dry_enter(1, ["B0", "3", "4", "5", "6", "B5", "7", "B7"])
a.label("L_retB")
a("s_cmp_lg_u32 s26, 0")
a("s_cbranch_scc1 L_noqc")
a("s_waitcnt vmcnt(9)")
a("s_branch L_noqb")
a.label("L_noqc")
a("s_waitcnt vmcnt(8)")
a.label("L_noqb")
stamp()
a.raw("L_secB0:")
a("s_barrier")
a("s_barrier")
a(f"global_load_dwordx4 {vr(vW1,4)}, {v(vOFF+2)}, s[44:45]")
a(f"global_load_dwordx4 {vr(vWO,4)}, {v(vOFF+0)}, s[40:41] nt")
a(f"global_load_dwordx4 {vr(vWO+4,4)}, {v(vOFF+0)}, s[40:41] offset:1024 nt")
a(f"global_load_dwordx4 {vr(vW2,4)}, {v(vOFF+0)}, s[42:43] nt")
stamp()
a("s_barrier")
for i in range(4):
    a(f"ds_read_b128 {vr(vQ+4*i,4)}, {v(vOFF+4)} offset:{L_QI+64*i}")
a(f"v_mov_b32 {T(0)}, 0")
a(f"ds_read_b32 {T(0)}, {T(0)} offset:{L_MODE}")
stamp()
a("s_waitcnt lgkmcnt(0)")
a(f"v_readfirstlane_b32 s63, {T(0)}")
for i in range(4):
    c = "0" if i == 0 else vr(vD, 4)
    a(f"v_mfma_f32_16x16x32_bf16 {vr(vD,4)}, {vr(vK+4*i,4)}, {vr(vQ+4*i,4)}, {c}")
DD = [v(vD+r) for r in range(4)]
dppstep("v_add_f32", DD, "quad_perm:[1,0,3,2]")
dppstep("v_add_f32", DD, "quad_perm:[2,3,0,1]")
def round4():
    a(f"v_cvt_pk_bf16_f32 {T(0)}, {v(vD)}, {v(vD+1)}")
    a(f"v_cvt_pk_bf16_f32 {T(1)}, {v(vD+2)}, {v(vD+3)}")
    a(f"v_lshlrev_b32 {v(vD)}, 16, {T(0)}")
    a(f"v_and_b32 {v(vD+1)}, 0xffff0000, {T(0)}")
    a(f"v_lshlrev_b32 {v(vD+2)}, 16, {T(1)}")
    a(f"v_and_b32 {v(vD+3)}, 0xffff0000, {T(1)}")
round4()
for r in range(4):
    a(f"v_mul_f32 {v(vD+r)}, s54, {v(vD+r)}")
round4()
a(f"v_max3_f32 {T(2)}, {v(vD)}, {v(vD+1)}, {v(vD+2)}")
a(f"v_max_f32 {T(2)}, {T(2)}, {v(vD+3)}")
swapred("v_max_f32", [T(2)], [T(4)], 16)
swapred("v_max_f32", [T(2)], [T(4)], 32)
for r in range(4):
    a(f"v_sub_f32 {v(vD+r)}, {v(vD+r)}, {T(2)}")
for r in range(4):
    a(f"v_mul_f32 {v(vD+r)}, s53, {v(vD+r)}")
for r in range(4):
    a(f"v_exp_f32 {v(vD+r)}, {v(vD+r)}")
a(f"v_add_f32 {T(3)}, {v(vD)}, {v(vD+1)}")
a(f"v_add_f32 {T(4)}, {v(vD+2)}, {v(vD+3)}")
a(f"v_cvt_pk_bf16_f32 {T(6)}, {v(vD)}, {v(vD+1)}")
a(f"v_cvt_pk_bf16_f32 {T(7)}, {v(vD+2)}, {v(vD+3)}")
a(f"v_add_f32 {T(3)}, {T(3)}, {T(4)}")
swapred("v_add_f32", [T(3)], [T(4)], 16)
swapred("v_add_f32", [T(3)], [T(4)], 32)
for h in range(4):
    for kq in range(4):
        a(f"v_readlane_b32 s{sP0+h*8+2*kq}, {T(6)}, {kq*16+h*4}")
        a(f"v_readlane_b32 s{sP0+h*8+2*kq+1}, {T(7)}, {kq*16+h*4}")
a(f"v_lshlrev_b32 {T(8)}, 1, {vL}")
a("s_lshl_b32 s49, s26, 5")
a(f"v_add_u32 {T(8)}, s49, {T(8)}")
exec_set(0x1111, 0)
a(f"ds_write_b64 {T(8)}, {vr(4,2)} offset:{L_ML}")
exec_all()
sec(3)
OA = [[v(vA+2*h), v(vA+2*h+1)] for h in range(4)]
def pv(t):
    a(f"v_perm_b32 {T(10)}, {v(vV+2*t+1)}, {v(vV+2*t)}, {SEL_LO}")
    a(f"v_perm_b32 {T(11)}, {v(vV+2*t+1)}, {v(vV+2*t)}, {SEL_HI}")
    for h in range(4):
        if t == 0:
            a(f"v_dot2_f32_bf16 {OA[h][0]}, {T(10)}, s{sP0+h*8+t}, 0")
            a(f"v_dot2_f32_bf16 {OA[h][1]}, {T(11)}, s{sP0+h*8+t}, 0")
        else:
            a(f"v_dot2_f32_bf16 {OA[h][0]}, {T(10)}, s{sP0+h*8+t}, {OA[h][0]}")
            a(f"v_dot2_f32_bf16 {OA[h][1]}, {T(11)}, s{sP0+h*8+t}, {OA[h][1]}")
for t in range(4):
    pv(t)
a("s_waitcnt vmcnt(4)")
stamp()
for t in range(4, 8):
    pv(t)
a("s_lshl_b32 s49, s26, 11")
a(f"v_add_u32 {T(8)}, s49, {v(vOFF+12)}")
for h in range(4):
    a(f"ds_write_b64 {T(8)}, {vr(vA+2*h,2)} offset:{L_O+512*h}")
a("s_waitcnt lgkmcnt(0)")
a("s_barrier")
sec(4)
a("s_lshr_b32 s49, s26, 1")
a("s_lshl_b32 s55, s49, 3")
a(f"v_mov_b32 {T(16)}, s55")
a(f"v_and_b32 {T(15)}, 127, {vTID}")
a(f"v_lshlrev_b32 {T(17)}, 2, {T(15)}")
a("s_lshl_b32 s55, s49, 9")
a(f"v_add_u32 {T(17)}, s55, {T(17)}")
for w in range(8):
    a(f"ds_read_b64 {vr(vK+2*w,2)}, {T(16)} offset:{L_ML+32*w}")
for w in range(8):
    a(f"ds_read_b32 {v(vV+w)}, {T(17)} offset:{L_O+2048*w}")
a("s_lshr_b32 s49, s26, 1")
a(f"s_lshl_b32 s49, s49, {CS+3}")
a("s_lshl_b32 s55, s28, 8")
a("s_add_u32 s49, s49, s55")
a(f"s_add_u32 s49, s49, {R_O}")
a(f"v_lshrrev_b32 {T(8)}, 4, {T(15)}")
a(f"v_lshlrev_b32 {T(8)}, {CS}, {T(8)}")
a(f"v_and_b32 {T(6)}, 15, {T(15)}")
a(f"v_lshlrev_b32 {T(6)}, 3, {T(6)}")
a(f"v_add3_u32 {T(8)}, {T(8)}, {T(6)}, s49")
a(f"v_lshlrev_b32 {T(9)}, {CS}, {T(15)}")
a(f"v_add_u32 {T(9)}, s49, {T(9)}")
a(f"v_mov_b32 {T(4)}, s22")
a(f"v_mov_b32 {T(5)}, s23")
a("s_waitcnt lgkmcnt(0)")
a(f"v_max3_f32 {T(2)}, {v(vK)}, {v(vK+2)}, {v(vK+4)}")
a(f"v_max3_f32 {T(2)}, {T(2)}, {v(vK+6)}, {v(vK+8)}")
a(f"v_max3_f32 {T(2)}, {T(2)}, {v(vK+10)}, {v(vK+12)}")
a(f"v_max_f32 {T(2)}, {T(2)}, {v(vK+14)}")
for w in range(8):
    a(f"v_sub_f32 {v(vK+2*w)}, {v(vK+2*w)}, {T(2)}")
for w in range(8):
    a(f"v_mul_f32 {v(vK+2*w)}, s53, {v(vK+2*w)}")
for w in range(8):
    a(f"v_exp_f32 {v(vK+2*w)}, {v(vK+2*w)}")
a(f"v_mul_f32 {T(3)}, {v(vK)}, {v(vK+1)}")
a(f"v_mul_f32 {v(vG)}, {v(vK)}, {v(vV)}")
for w in range(1, 8):
    a(f"v_fmac_f32 {T(3)}, {v(vK+2*w)}, {v(vK+2*w+1)}")
    a(f"v_fmac_f32 {v(vG)}, {v(vK+2*w)}, {v(vV+w)}")
a(f"v_mov_b32_dpp {v(vG+1)}, {v(vG)} quad_perm:[1,0,3,2] {DPP}")
a(f"v_cmp_gt_u32 vcc, 8, {T(15)}")
a("s_cmp_eq_u32 s63, 0")
a("s_cbranch_scc0 L_oslow")
exec_set(0x55555555, 0x55555555)
a(f"global_store_dwordx4 {T(8)}, {vr(vG,4)}, s[56:57]")
exec_all()
a("s_and_saveexec_b64 s[50:51], vcc")
a("s_cbranch_execz L_opub")
a(f"global_store_dwordx4 {T(9)}, {vr(4,4)}, s[56:57] offset:128")
a("s_branch L_opub")
a.label("L_oslow")
exec_set(0x55555555, 0x55555555)
a(f"global_store_dwordx4 {T(8)}, {vr(vG,4)}, s[58:59] sc1")
exec_all()
a("s_and_saveexec_b64 s[50:51], vcc")
a("s_cbranch_execz L_opub")
a(f"global_store_dwordx4 {T(9)}, {vr(4,4)}, s[58:59] offset:128 sc1")
a.label("L_opub")
exec_all()
stamp()
a("s_waitcnt vmcnt(4)")
HA = [v(vA+8+i) for i in range(4)]
a(f"v_permlane32_swap_b32 {v(vW1+0)}, {v(vW1+2)}")
a(f"v_permlane32_swap_b32 {v(vW1+1)}, {v(vW1+3)}")
for c in range(2):
    a(f"v_perm_b32 {T(2*c)}, {v(vW1+2+c)}, {v(vW1+c)}, {SEL_LO}")
    a(f"v_perm_b32 {T(2*c+1)}, {v(vW1+2+c)}, {v(vW1+c)}, {SEL_HI}")
for i in range(4):
    a(f"v_dot2_f32_bf16 {HA[i]}, {T(i)}, {vXH}, 0")
red32("v_add_f32", HA, [T(i) for i in range(4)])
a(f"v_lshrrev_b32 {T(0)}, 5, {vL}")
a(f"v_lshlrev_b32 {T(2)}, 4, {T(0)}")
a("s_lshl_b32 s49, s26, 5")
a(f"v_add_u32 {T(2)}, s49, {T(2)}")
exec_set(1, 1)
a(f"ds_write_b128 {T(2)}, {vr(vA+8,4)} offset:{L_HP}")
exec_all()
PM, PO = vP, vP + 2
sec(5)
a("s_waitcnt vmcnt(0) lgkmcnt(0)")
a("s_barrier")
a("s_lshl_b32 s55, s26, 2")
a(f"v_mov_b32 {T(14)}, s55")
for w in range(8):
    a(f"ds_read_b32 {v(vV+8+w)}, {T(14)} offset:{L_HP+32*w}")
a(f"ds_read_b64 {vr(PM,2)}, {v(vOFF+10)} offset:{L_OI+64}")
a(f"ds_read_b64 {vr(PO,2)}, {v(vOFF+11)} offset:{L_OI}")
a("s_waitcnt lgkmcnt(0)")
sum8([v(vV+8+i) for i in range(8)], T(16))
bf16r(T(16), T(16), T(17))
a(f"v_max_f32 {T(16)}, 0, {T(16)}")
a(f"v_and_b32 {T(16)}, s48, {T(16)}")
a(f"v_mov_b32 {T(0)}, {v(PM)}")
red32("v_max_f32", [T(0)], [T(1)])
a(f"v_sub_f32 {T(0)}, {v(PM)}, {T(0)}")
a(f"v_mul_f32 {T(0)}, s53, {T(0)}")
a(f"v_exp_f32 {T(0)}, {T(0)}")
a(f"v_mul_f32 {T(1)}, {T(0)}, {v(PM+1)}")
a(f"v_mul_f32 {T(2)}, {T(0)}, {v(PO)}")
a(f"v_mul_f32 {T(3)}, {T(0)}, {v(PO+1)}")
red32("v_add_f32", [T(1), T(2), T(3)], [T(4), T(5), T(6)])
a(f"v_rcp_f32 {T(4)}, {T(1)}")
a(f"v_fma_f32 {T(5)}, -{T(1)}, {T(4)}, 1.0")
a(f"v_fma_f32 {T(4)}, {T(5)}, {T(4)}, {T(4)}")
a(f"v_mul_f32 {T(2)}, {T(2)}, {T(4)}")
a(f"v_mul_f32 {T(3)}, {T(3)}, {T(4)}")
a(f"v_cvt_pk_bf16_f32 {T(0)}, {T(2)}, {T(3)}")
for c in range(4):
    a(f"v_perm_b32 {T(2+2*c)}, {v(vWO+4+c)}, {v(vWO+c)}, {SEL_LO}")
    a(f"v_perm_b32 {T(3+2*c)}, {v(vWO+4+c)}, {v(vWO+c)}, {SEL_HI}")
for i in range(8):
    a(f"v_dot2_f32_bf16 {v(vA+i)}, {T(2+i)}, {T(0)}, 0")
for c in range(4):
    a(f"v_lshlrev_b32 {v(vA+8+2*c)}, 16, {v(vW2+c)}")
    a(f"v_and_b32 {v(vA+9+2*c)}, 0xffff0000, {v(vW2+c)}")
for i in range(8):
    a(f"v_mul_f32 {v(vA+8+i)}, {v(vA+8+i)}, {T(16)}")
a(f"v_lshlrev_b32 {T(10)}, 5, {vL}")
a("s_lshl_b32 s49, s26, 12")
a(f"v_add_u32 {T(10)}, s49, {T(10)}")
a(f"ds_write_b128 {T(10)}, {vr(vA,4)} offset:{L_AB}")
a(f"ds_write_b128 {T(10)}, {vr(vA+4,4)} offset:{L_AB+16}")
a(f"ds_write_b128 {T(10)}, {vr(vA+8,4)} offset:{L_AB+2048}")
a(f"ds_write_b128 {T(10)}, {vr(vA+12,4)} offset:{L_AB+2048+16}")
a("s_waitcnt lgkmcnt(0)")
a("s_barrier")
a(f"v_lshlrev_b32 {T(16)}, 2, {vTID}")
for w in range(8):
    a(f"ds_read_b32 {v(vK+w)}, {T(16)} offset:{L_AB+4096*w}")
    a(f"ds_read_b32 {v(vK+8+w)}, {T(16)} offset:{L_AB+4096*w+2048}")
a(f"v_lshrrev_b32 {T(6)}, 4, {vTID}")
a(f"v_lshlrev_b32 {T(6)}, {CS}, {T(6)}")
a(f"v_and_b32 {T(7)}, 15, {vTID}")
a(f"v_lshlrev_b32 {T(7)}, 4, {T(7)}")
a("s_lshl_b32 s49, s28, 8")
a(f"s_add_u32 s49, s49, {R_FA}")
a(f"v_add3_u32 {T(6)}, {T(6)}, {T(7)}, s49")
a("s_waitcnt lgkmcnt(0)")
sum8([v(vK+i) for i in range(8)], v(vG))
sum8([v(vK+8+i) for i in range(8)], v(vG+1))
a("s_cmp_eq_u32 s63, 0")
a("s_cbranch_scc0 L_faslow")
a(f"global_store_dwordx4 {T(6)}, {vr(vG,4)}, s[56:57]")
a("s_branch L_fapub")
a.label("L_faslow")
a(f"global_store_dwordx4 {T(6)}, {vr(vG,4)}, s[58:59] sc1")
a.label("L_fapub")
if STAMPS:
    a("s_cbranch_execz L_dry_done")
    a(f"s_cmp_lg_u32 s26, {STW}")
    a("s_cbranch_scc1 L_end")
    stamp()
    a(f"v_writelane_b32 {vST}, s52, 31")
    a("s_lshl_b32 s49, s2, 7")
    a(f"s_add_u32 s49, s49, {STAMP_OFF+0x100000:#x}")
    a(f"v_add_u32 {T(10)}, s49, {v(vOFF+5)}")
    exec_set(0xffffffff, 0)
    a(f"global_store_dword {T(10)}, {vST}, s[24:25]")
    exec_all()
a("s_cbranch_execz L_dry_done")
a("s_branch L_end")
a.label("L_comm")
a.raw("L_sec6:")
for i in range(4):
    a(f"v_mov_b32 {T(12+i)}, 0")
a("s_lshl_b32 s49, s28, 8")
a(f"s_add_u32 s50, s49, {R_O}")
a(f"s_add_u32 s51, s49, {R_FA}")
def prestore(sreg):
    a(f"v_add_u32 {T(11)}, {sreg}, {v(vOFF+3)}")
    for k in range(8):
        if k:
            a(f"v_add_u32 {T(11)}, {4<<CS}, {T(11)}")
        a(f"global_store_dwordx4 {T(11)}, {vr(14,4)}, s[56:57]")
a("s_waitcnt vmcnt(0)")
a(f"v_readfirstlane_b32 s22, {vE}")
a("s_add_u32 s22, s22, 1")
a("s_xor_b32 s23, s22, 0xa5c3a5c0")
a("s_xor_b32 s15, s23, s14")
a(f"v_mov_b32 {v(vG+2)}, s22")
a(f"v_mov_b32 {v(vG+3)}, s23")
stamp()
a("s_barrier")
a("s_barrier")
prestore("s50")
prestore("s51")
a("s_barrier")
QSH[0] = True
inbox_loads(v(vOFF+0), 8)
a("s_barrier")
a("s_waitcnt vmcnt(0)")
stamp()
sec("B5")
poll_loop("q", v(vOFF+0), 8, first_issued=True, tagcheck=tagcheck_q)
QSH[0] = False
for k in range(8):
    a(f"ds_write_b64 {v(vOFF+12)}, {vr(vP+4*k,2)} offset:{L_QI+512*k}")
a(f"v_cmp_ne_u32 vcc, 0, {T(3)}")
a("s_cmp_eq_u64 vcc, 0")
a("s_cselect_b32 s63, 0, 1")
a(f"v_mov_b32 {T(0)}, 0")
a(f"v_mov_b32 {T(1)}, s63")
a(f"ds_write_b32 {T(0)}, {T(1)} offset:{L_MODE}")
a("s_cmp_eq_u32 s63, 0")
a("s_cselect_b32 s64, s30, s34")
a("s_cselect_b32 s65, s31, s35")
a("s_cselect_b32 s66, s32, s60")
a("s_cselect_b32 s67, s33, s61")
a("s_waitcnt lgkmcnt(0)")
stamp()
a("s_barrier")
sec(7)
a("s_barrier")
stamp()
SELB[0] = True
poll_loop("o", v(vOFF+14), 8, dual=False)
for k in range(8):
    a(f"ds_write_b64 {v(vOFF+13)}, {vr(vP+4*k,2)} offset:{L_OI+512*k}")
a("s_waitcnt lgkmcnt(0)")
stamp()
a("s_barrier")
a("s_barrier")
stamp()
sec("B7")
poll_loop("fa", v(vOFF+15), 8, dual=False)
SELB[0] = False
stamp()
for c in range(2):
    sum8([v(vP+4*k+c) for k in range(8)], v(vG+c))
GG = [v(vG), v(vG+1)]
swapred("v_add_f32", GG, [T(0), T(1)], 16)
swapred("v_add_f32", GG, [T(0), T(1)], 32)
a("s_lshl_b32 s49, s27, 8")
a("s_add_u32 s49, s49, s3")
a(f"s_add_u32 s49, s49, {R_FB}")
a(f"v_add_u32 {T(0)}, s49, {v(vOFF+0)}")
exec_set(0xffff, 0)
a(f"global_store_dwordx4 {T(0)}, {vr(vG,4)}, s[24:25] sc1")
exec_all()
a("s_and_b32 s49, s28, 7")
a("s_cmp_lg_u32 s49, s27")
a("s_cbranch_scc1 L_fin")
a(f"v_lshlrev_b32 {T(10)}, 1, {vL}")
a("s_lshl_b32 s49, s28, 5")
a(f"v_add_u32 {T(10)}, s49, {T(10)}")
exec_set(0xffff, 0)
a(f"global_load_ushort {T(12)}, {T(10)}, s[4:5]")
exec_all()
a(f"v_add_u32 {T(11)}, {R_FB}, {v(vOFF+0)}")
poll_loop("fb", T(11), 2, dual=False)
a(f"v_add_f32 {v(vG)}, {v(vP)}, {v(vP+4)}")
a(f"v_add_f32 {v(vG+1)}, {v(vP+1)}, {v(vP+5)}")
swapred("v_add_f32", GG, [T(0), T(1)], 16)
swapred("v_add_f32", GG, [T(0), T(1)], 32)
a(f"v_cvt_pk_bf16_f32 {T(0)}, {v(vG)}, {v(vG+1)}")
a(f"v_lshlrev_b32 {T(1)}, 16, {T(0)}")
a(f"v_and_b32 {T(2)}, 0xffff0000, {T(0)}")
a(f"v_lshlrev_b32 {T(3)}, 16, {T(12)}")
a(f"v_add_f32 {T(1)}, {T(1)}, {T(3)}")
bf16r(T(1), T(1), T(4))
a(f"v_add_f32 {T(1)}, {T(1)}, {T(2)}")
a(f"v_cvt_pk_bf16_f32 {T(0)}, {T(1)}, {T(1)}")
exec_set(0xffff, 0)
a(f"global_store_short {T(10)}, {T(0)}, s[20:21]")
exec_all()
a("s_cmp_lg_u32 s2, 0")
a("s_cbranch_scc1 L_fin")
a(f"v_mov_b32 {T(1)}, {EPOCH:#x}")
a(f"v_mov_b32 {T(2)}, s22")
exec_set(1, 0)
a(f"global_store_dword {T(1)}, {T(2)}, s[24:25]")
exec_all()
a.label("L_fin")
a("s_cbranch_execz L_dry_done")
def stamp_store(extra):
    a(f"v_writelane_b32 {vST}, s52, 31")
    a("s_lshl_b32 s49, s2, 7")
    a(f"s_add_u32 s49, s49, {STAMP_OFF+extra:#x}")
    a(f"v_add_u32 {T(10)}, s49, {v(vOFF+5)}")
    exec_set(0xffffffff, 0)
    a(f"global_store_dword {T(10)}, {vST}, s[24:25]")
    exec_all()
if STAMPS:
    stamp()
    stamp_store(0)
a.label("L_end")
a("s_endpgm")
a.raw(f""".section .rodata,"a"
.p2align 6
.amdhsa_kernel {NAME}_kernel
  .amdhsa_next_free_vgpr {NVGPR}
  .amdhsa_next_free_sgpr 102
  .amdhsa_accum_offset {NVGPR}
  .amdhsa_group_segment_fixed_size 0
  .amdhsa_kernarg_size 88
  .amdhsa_user_sgpr_count 2
  .amdhsa_user_sgpr_kernarg_segment_ptr 1
  .amdhsa_system_sgpr_workgroup_id_x 1
  .amdhsa_float_denorm_mode_32 3
  .amdhsa_float_denorm_mode_16_64 3
.end_amdhsa_kernel""")

out = sys.argv[1]
open(out, "w").write(a.text())
```

```python
import sys
from asmlib import Asm

NAME = "parallel_sum__sliding_block_cached__dense_activation_relu__decode"
STAMPS = "--stamps" in sys.argv
STW = 7 if "--w7" in sys.argv else 0
NA = int([x for x in sys.argv if x.startswith("--na=")][0][5:]) if any(x.startswith("--na=") for x in sys.argv) else 8
N1 = 8
SPIN_CAP = 400000

L_XN = 0
L_QP = 1024
L_QB = 3072
L_MODE = 3200
L_HP = 3328
L_ML = 3584
L_O = 4096
L_AB = 20480
L_QI = 53248
L_OI = 57344
LDS_BYTES = 90112

R_Q = 0
R_O = 8192
R_FA = 16384
R_FB = 24576
R_B = 32768
SH = 16
CS = SH + 3
STAMP_OFF = 20 << 20
EPOCH = 24 << 20

a = Asm()

vTID, vL = "v0", "v1"
def T(i): return f"v{2+i}"
vX = 20
vST = "v24"
vXP = "v25"
vWQ = 28
vW1 = 36
vK = 40
vV = 56
vWO = 72
vW2 = 80
vQ = 84
vD = 100
vA = 104
vOFF = 120
vP = 40
vXH = "v26"
vE = "v27"
vG = 136
NVGPR = 140
def v(i): return f"v{i}"
def vr(i, n): return f"v[{i}:{i+n-1}]"

SEL_LO, SEL_HI = "s46", "s47"
sP0 = 68
nstamp = [0]
def stamp():
    if not STAMPS: return
    i = nstamp[0]; nstamp[0] += 1
    a("s_memrealtime s[100:101]")
    a("s_waitcnt lgkmcnt(0)")
    a(f"v_writelane_b32 {vST}, s100, {i}")

DPP = "row_mask:0xf bank_mask:0xf"
def dppstep(op, regs, pat):
    for r in regs:
        a(f"{op}_dpp {r}, {r}, {r} {pat} {DPP}")
def red16(op, regs):
    for pat in ("quad_perm:[1,0,3,2]", "quad_perm:[2,3,0,1]", "row_half_mirror", "row_mirror"):
        dppstep(op, regs, pat)
def swapred(op, regs, tmps, which):
    for r, t in zip(regs, tmps):
        a(f"v_mov_b32 {t}, {r}")
    for r, t in zip(regs, tmps):
        a(f"v_permlane{which}_swap_b32 {r}, {t}")
    for r, t in zip(regs, tmps):
        a(f"{op} {r}, {r}, {t}")
def red32(op, regs, tmps):
    red16(op, regs); swapred(op, regs, tmps, 16)
def red64(op, regs, tmps):
    red32(op, regs, tmps); swapred(op, regs, tmps, 32)
def bf16r(dst, src, tmp):
    a(f"v_cvt_pk_bf16_f32 {tmp}, {src}, {src}")
    a(f"v_lshlrev_b32 {dst}, 16, {tmp}")
def exec_set(lo, hi):
    a(f"s_and_b32 exec_lo, s16, {lo:#x}")
    a(f"s_and_b32 exec_hi, s17, {hi:#x}")
def exec_all():
    a("s_mov_b64 exec, s[16:17]")
def sec(k):
    a("s_cbranch_execz L_dry_done")
    a._close()
    a.raw(f"L_sec{k}:")
def dry_enter(which, names):
    a(f"s_mov_b32 s19, {which}")
    a("s_mov_b32 s18, s26")
    a("s_mov_b64 s[16:17], 0")
    a("s_mov_b64 exec, 0")
    a("s_mov_b32 s26, 0")
    for k in range(1, 8):
        a(f"s_cmp_eq_u32 s18, {k}")
        a(f"s_cbranch_scc1 L_sec{names[k]}")
    a(f"s_branch L_sec{names[0]}")
def add64(dst, base, off):
    a(f"s_add_u32 s{dst}, s{base}, {off}")
    a(f"s_addc_u32 s{dst+1}, s{base+1}, 0")
def sum8(regs, dst):
    r = regs
    a(f"v_add_f32 {r[0]}, {r[0]}, {r[1]}")
    a(f"v_add_f32 {r[2]}, {r[2]}, {r[3]}")
    a(f"v_add_f32 {r[4]}, {r[4]}, {r[5]}")
    a(f"v_add_f32 {r[6]}, {r[6]}, {r[7]}")
    a(f"v_add_f32 {r[0]}, {r[0]}, {r[2]}")
    a(f"v_add_f32 {r[4]}, {r[4]}, {r[6]}")
    a(f"v_add_f32 {dst}, {r[0]}, {r[4]}")
SELB = [False]
QSH = [False]
def inbox_loads(offreg, n, b=False):
    if QSH[0]:
        base = "s[58:59]" if b else "s[56:57]"
        for k in range(n):
            off = v(vOFF+0) if k < 4 else v(vOFF+6)
            a(f"global_load_dwordx4 {vr(vP+4*k,4)}, {off}, {base} offset:{1024*(k%4)} sc1")
        return
    lo, hi = ("s[34:35]", "s[60:61]") if b else ("s[30:31]", "s[32:33]")
    if SELB[0]:
        lo, hi = "s[64:65]", "s[66:67]"
    for k in range(n):
        base = lo if k < 4 else hi
        a(f"global_load_dwordx4 {vr(vP+4*k,4)}, {offreg}, {base} offset:{1024*(k%4)} sc1")
def tagcheck(n):
    a(f"v_xor_b32 {T(0)}, s22, {v(vP+2)}")
    a(f"v_xor_b32 {T(1)}, s23, {v(vP+3)}")
    a(f"v_or_b32 {T(0)}, {T(0)}, {T(1)}")
    for k in range(1, n):
        a(f"v_xor_b32 {T(1)}, s22, {v(vP+4*k+2)}")
        a(f"v_xor_b32 {T(2)}, s23, {v(vP+4*k+3)}")
        a(f"v_or3_b32 {T(0)}, {T(0)}, {T(1)}, {T(2)}")
    a(f"v_cmp_ne_u32 vcc, 0, {T(0)}")
    a("s_cmp_eq_u64 vcc, 0")
def tagcheck_q(n):
    for k in range(n):
        a(f"v_xor_b32 {T(1)}, s22, {v(vP+4*k+2)}")
        a(f"v_xor_b32 {T(2)}, s15, {v(vP+4*k+3)}")
        if k == 0:
            a(f"v_mov_b32 {T(3)}, {T(2)}")
            a(f"v_mov_b32 {T(0)}, {T(1)}")
        else:
            a(f"v_or_b32 {T(3)}, {T(3)}, {T(2)}")
            a(f"v_or_b32 {T(0)}, {T(0)}, {T(1)}")
    a(f"v_and_b32 {T(2)}, -8, {T(3)}")
    a(f"v_or_b32 {T(0)}, {T(0)}, {T(2)}")
    a(f"v_cmp_ne_u32 vcc, 0, {T(0)}")
    a("s_cmp_eq_u64 vcc, 0")
def spin_guard():
    a("s_add_u32 s52, s52, 1")
    a(f"s_cmp_gt_u32 s52, {SPIN_CAP}")
    a("s_cbranch_scc1 L_end")
def poll_loop(name, offreg, n, first_issued=False, dual=True, tagcheck=tagcheck):
    if first_issued:
        tagcheck(n)
        a(f"s_cbranch_scc1 L_{name}_ok")
    a.label(f"L_{name}_loop")
    inbox_loads(offreg, n)
    spin_guard()
    a("s_waitcnt vmcnt(0)")
    tagcheck(n)
    if not dual:
        a(f"s_cbranch_scc0 L_{name}_loop")
    else:
        a(f"s_cbranch_scc1 L_{name}_ok")
        a("s_and_b32 s49, s52, 3")
        a("s_cmp_lg_u32 s49, 3")
        a(f"s_cbranch_scc1 L_{name}_loop")
        inbox_loads(offreg, n, b=True)
        a("s_waitcnt vmcnt(0)")
        tagcheck(n)
        a(f"s_cbranch_scc0 L_{name}_loop")
    a.label(f"L_{name}_ok")

a.raw(f"""; Kernarg layout: x, k_cache, v_cache, wq, wo, B_x, w1, w2, out, debug, ws (8-byte pointers)
; @launch grid=(256,1,1) block=(576,1,1) lds={LDS_BYTES}
.amdgcn_target "amdgcn-amd-amdhsa--gfx950"
.text
.globl {NAME}_kernel
.p2align 8
.type {NAME}_kernel,@function
{NAME}_kernel:""")

a("s_cmp_ge_u32 s2, 256")
a("s_cbranch_scc1 L_end")
a("s_load_dwordx16 s[4:19], s[0:1], 0")
a("s_load_dwordx4 s[20:23], s[0:1], 64")
a("s_load_dwordx2 s[24:25], s[0:1], 80")
stamp()
a(f"v_and_b32 {vL}, 63, {vTID}")
a(f"v_lshrrev_b32 {T(0)}, 6, {vTID}")
a(f"v_readfirstlane_b32 s26, {T(0)}")
a("s_and_b32 s27, s2, 7")
a("s_lshr_b32 s28, s2, 3")
a(f"v_lshlrev_b32 {v(vOFF+0)}, 4, {vL}")
a(f"v_lshrrev_b32 {T(6)}, 3, {vL}")
a(f"v_and_b32 {T(7)}, 7, {vL}")
a(f"v_lshlrev_b32 {v(vOFF+1)}, 14, {T(6)}")
a(f"v_lshl_add_u32 {v(vOFF+1)}, {T(7)}, 4, {v(vOFF+1)}")
a(f"v_mov_b32 {T(8)}, {EPOCH:#x}")
a(f"v_and_b32 {T(9)}, 15, {vL}")
a(f"v_lshrrev_b32 {T(10)}, 4, {vL}")
a(f"v_lshlrev_b32 {v(vOFF+3)}, {CS}, {T(10)}")
a(f"v_lshl_add_u32 {v(vOFF+3)}, {T(9)}, 4, {v(vOFF+3)}")
a("s_and_b32 s49, s28, 7")
a("s_lshr_b32 s49, s49, 1")
a("s_lshl_b32 s49, s49, 2")
a("s_lshr_b32 s55, s28, 3")
a("s_add_u32 s49, s49, s55")
a("s_lshl_b32 s49, s49, 9")
a("s_and_b32 s55, s28, 1")
a("s_lshl_b32 s55, s55, 8")
a("s_add_u32 s62, s49, s55")
a("s_lshr_b32 s49, s28, 3")
a("s_lshl_b32 s49, s49, 7")
a("s_lshl_b32 s55, s26, 4")
a("s_add_u32 s49, s49, s55")
a("s_lshl_b32 s49, s49, 13")
a("s_lshl_b32 s55, s27, 10")
a("s_add_u32 s49, s49, s55")
a("s_and_b32 s55, s28, 7")
a("s_lshl_b32 s55, s55, 7")
a("s_add_u32 s49, s49, s55")
a(f"s_lshl_b32 s55, s27, {SH}")
a("s_waitcnt lgkmcnt(0)")
a("s_getreg_b32 s14, hwreg(HW_REG_XCC_ID, 0, 3)")
add64(56, 24, "s55")
add64(64, 10, "s49")
add64(66, 64, 8192)
a(f"global_load_dword {vE}, {T(8)}, s[24:25]")
a("s_cmp_eq_u32 s26, 8")
a("s_cbranch_scc1 L_nold")
a(f"global_load_dwordx4 {vr(vX,4)}, {v(vOFF+0)}, s[4:5]")
a(f"global_load_dwordx4 {vr(vWQ,4)}, {v(vOFF+1)}, s[64:65] nt")
a(f"global_load_dwordx4 {vr(vWQ+4,4)}, {v(vOFF+1)}, s[66:67] nt")
a.label("L_nold")
a(f"v_lshlrev_b32 {v(vOFF+4)}, 8, {T(9)}")
a(f"v_lshl_add_u32 {v(vOFF+4)}, {T(10)}, 4, {v(vOFF+4)}")
a("s_lshl_b32 s50, s27, 24")
a("s_add_u32 s50, s50, 0xf00000")
a("s_lshl_b32 s55, s28, 15")
a("s_add_u32 s50, s50, s55")
a("s_lshl_b32 s55, s26, 12")
a("s_add_u32 s50, s50, s55")
add64(36, 6, "s50")
add64(38, 8, "s50")
add64(58, 56, R_B)
a(f"s_mov_b32 {SEL_LO}, 0x05040100")
a(f"s_mov_b32 {SEL_HI}, 0x07060302")
a("s_mov_b32 s53, 0x3fb8aa3b")
a("s_mov_b32 s54, 0x3db504f3")
a("s_mov_b32 s52, 0")
a("s_mul_i32 s29, s27, 28")
a("s_add_u32 s29, s29, s28")
a("s_cmp_lt_u32 s28, 28")
a("s_cselect_b32 s29, s29, 0")
a("s_cselect_b32 s48, -1, 0")
a(f"s_lshl_b32 s49, s2, {SH}")
add64(30, 24, "s49")
add64(32, 30, 4096)
add64(34, 30, R_B)
add64(60, 30, R_B + 4096)
a("s_mul_i32 s49, s26, 229376")
a("s_lshl_b32 s55, s29, 4")
a("s_add_u32 s49, s49, s55")
add64(44, 16, "s49")
a(f"v_and_b32 {T(6)}, 31, {vL}")
a(f"v_lshrrev_b32 {T(7)}, 5, {vL}")
a(f"v_lshl_add_u32 {T(8)}, {T(6)}, 1, {T(7)}")
a("s_movk_i32 s55, 3584")
a(f"v_mul_lo_u32 {v(vOFF+2)}, {T(8)}, s55")
a("s_lshl_b32 s49, s27, 2")
a("s_lshr_b32 s55, s28, 3")
a("s_add_u32 s49, s49, s55")
a("s_lshl_b32 s49, s49, 7")
a("s_and_b32 s55, s28, 7")
a("s_lshl_b32 s55, s55, 4")
a("s_add_u32 s49, s49, s55")
a("s_lshl_b32 s55, s26, 1")
a("s_add_u32 s49, s49, s55")
a("s_lshl_b32 s49, s49, 10")
add64(40, 12, "s49")
a("s_lshl_b32 s49, s29, 3")
a("s_add_u32 s49, s49, s26")
a("s_lshl_b32 s49, s49, 10")
add64(42, 18, "s49")
a(f"v_lshlrev_b32 {v(vOFF+5)}, 2, {vL}")
a(f"v_lshlrev_b32 {v(vOFF+10)}, 7, {T(6)}")
a("s_lshl_b32 s49, s26, 3")
a(f"v_add_u32 {v(vOFF+11)}, s49, {v(vOFF+10)}")
a("s_lshl_b32 s49, s28, 3")
a("s_and_b32 s55, s28, 7")
a("s_add_u32 s49, s49, s55")
a(f"s_lshl_b32 s3, s49, {SH}")
a(f"v_min_u32 {T(11)}, 8, {T(9)}")
a(f"v_lshlrev_b32 {T(12)}, 8, {T(10)}")
a(f"v_lshl_add_u32 {T(12)}, {T(11)}, 4, {T(12)}")
a(f"v_add_u32 {v(vOFF+14)}, {R_O}, {T(12)}")
a(f"v_lshlrev_b32 {T(12)}, 7, {T(10)}")
a(f"v_lshl_add_u32 {v(vOFF+13)}, {T(11)}, 3, {T(12)}")
a(f"v_add_u32 {v(vOFF+15)}, {R_FA}, {v(vOFF+0)}")
a(f"v_lshlrev_b32 {v(vOFF+12)}, 3, {vL}")
a(f"v_add_u32 {v(vOFF+6)}, 4096, {v(vOFF+0)}")

a("s_mov_b64 s[16:17], -1")
a("s_cmp_eq_u32 s26, 8")
a("s_cbranch_scc1 L_comm")
a.guard = True
dry_enter(0, ["0", "A1", "A2", "A3", "A4", "A5", "1", "A7"])
a.label("L_dry_done")
a("s_mov_b64 s[16:17], -1")
a("s_mov_b64 exec, -1")
a("s_mov_b32 s26, s18")
a("s_mov_b32 s52, 0")
a("s_cmp_eq_u32 s19, 1")
a("s_cbranch_scc1 L_retB")
a.raw("L_sec0:")
a("s_waitcnt vmcnt(2)")
stamp()
for i in range(4):
    a(f"global_load_dwordx4 {vr(vK+4*i,4)}, {v(vOFF+4)}, s[36:37] offset:{64*i} nt")
for k in range(NA):
    a(f"global_load_dword {v(vV+k)}, {v(vOFF+5)}, s[38:39] offset:{256*k} nt")
a(f"v_readfirstlane_b32 s22, {vE}")
a("s_add_u32 s22, s22, 1")
a("s_xor_b32 s23, s22, 0xa5c3a5c0")
a("s_xor_b32 s15, s23, s14")
a(f"v_mov_b32 {v(vG+2)}, s22")
a(f"v_mov_b32 {v(vG+3)}, s23")
for i in range(4):
    a(f"v_lshlrev_b32 {T(2*i)}, 16, {v(vX+i)}")
    a(f"v_and_b32 {T(2*i+1)}, 0xffff0000, {v(vX+i)}")
a(f"v_add_f32 {T(8)}, {T(0)}, {T(1)}")
a(f"v_add_f32 {T(9)}, {T(2)}, {T(3)}")
a(f"v_add_f32 {T(10)}, {T(4)}, {T(5)}")
a(f"v_add_f32 {T(11)}, {T(6)}, {T(7)}")
a(f"v_add_f32 {T(8)}, {T(8)}, {T(9)}")
a(f"v_add_f32 {T(10)}, {T(10)}, {T(11)}")
a(f"v_add_f32 {T(8)}, {T(8)}, {T(10)}")
sec("A1")
red64("v_add_f32", [T(8)], [T(9)])
a(f"v_mul_f32 {T(8)}, 0x3b000000, {T(8)}")
a(f"v_sub_f32 {T(9)}, {T(0)}, {T(8)}")
a(f"v_mul_f32 {T(10)}, {T(9)}, {T(9)}")
for i in range(1, 8):
    a(f"v_sub_f32 {T(9)}, {T(i)}, {T(8)}")
    a(f"v_fmac_f32 {T(10)}, {T(9)}, {T(9)}")
sec("A2")
red64("v_add_f32", [T(10)], [T(9)])
a(f"v_mul_f32 {T(10)}, 0x3b000000, {T(10)}")
bf16r(T(8), T(8), T(9))
bf16r(T(10), T(10), T(9))
a(f"v_add_f32 {T(10)}, 0x3727c5ac, {T(10)}")
bf16r(T(10), T(10), T(9))
sec("A3")
a(f"v_sqrt_f32 {T(10)}, {T(10)}")
bf16r(T(10), T(10), T(9))
a(f"v_rcp_f32 {T(11)}, {T(10)}")
a(f"v_fma_f32 {T(9)}, -{T(10)}, {T(11)}, 1.0")
a(f"v_fma_f32 {T(11)}, {T(9)}, {T(11)}, {T(11)}")
for i in range(8):
    a(f"v_sub_f32 {T(i)}, {T(i)}, {T(8)}")
for i in range(4):
    a(f"v_cvt_pk_bf16_f32 {T(12+i)}, {T(2*i)}, {T(2*i+1)}")
for i in range(4):
    a(f"v_lshlrev_b32 {T(2*i)}, 16, {T(12+i)}")
    a(f"v_and_b32 {T(2*i+1)}, 0xffff0000, {T(12+i)}")
sec("A4")
for i in range(8):
    a(f"v_mul_f32 {T(i)}, {T(i)}, {T(11)}")
for i in range(4):
    a(f"v_cvt_pk_bf16_f32 {T(12+i)}, {T(2*i)}, {T(2*i+1)}")
a(f"ds_write_b128 {v(vOFF+0)}, {vr(14,4)} offset:{L_XN}")
a(f"v_lshrrev_b32 {T(0)}, 3, {vL}")
a("s_lshr_b32 s49, s28, 3")
a("s_lshl_b32 s49, s49, 6")
a("s_lshl_b32 s55, s26, 3")
a("s_add_u32 s49, s49, s55")
a(f"v_add_lshl_u32 {T(0)}, {T(0)}, s49, 2")
a(f"v_and_b32 {T(1)}, 31, {vL}")
a("s_lshl_b32 s49, s26, 5")
a(f"v_add_lshl_u32 {T(1)}, {T(1)}, s49, 2")
a("s_waitcnt lgkmcnt(0)")
a(f"ds_read_b32 {vXP}, {T(0)} offset:{L_XN}")
a(f"ds_read_b32 {vXH}, {T(1)} offset:{L_XN}")

sec(1)
a(f"s_waitcnt vmcnt({4+NA}) lgkmcnt(0)")
stamp()
QA = [v(vA+i) for i in range(8)]
for c in range(4):
    a(f"v_perm_b32 {T(2*c)}, {v(vWQ+4+c)}, {v(vWQ+c)}, {SEL_LO}")
    a(f"v_perm_b32 {T(2*c+1)}, {v(vWQ+4+c)}, {v(vWQ+c)}, {SEL_HI}")
for i in range(8):
    a(f"v_dot2_f32_bf16 {QA[i]}, {T(i)}, {vXP}, 0")
dppstep("v_add_f32", QA, "row_ror:8")
sec("A5")
swapred("v_add_f32", QA, [T(i) for i in range(8)], 16)
swapred("v_add_f32", QA, [T(i) for i in range(8)], 32)
a(f"v_lshlrev_b32 {T(1)}, 5, {vL}")
a("s_lshl_b32 s49, s26, 8")
a(f"v_add_u32 {T(1)}, s49, {T(1)}")
exec_set(0xff, 0)
a(f"ds_write_b128 {T(1)}, {vr(vA,4)} offset:{L_QP}")
a(f"ds_write_b128 {T(1)}, {vr(vA+4,4)} offset:{L_QP+16}")
exec_all()
a("s_waitcnt lgkmcnt(0)")
a("s_barrier")
stamp()
sec("A7")
a("s_cmp_lg_u32 s26, 0")
a("s_cbranch_scc1 L_noq")
for w in range(8):
    a(f"ds_read_b32 {T(w)}, {v(vOFF+5)} offset:{L_QP+256*w}")
a("s_waitcnt lgkmcnt(0)")
sum8([T(i) for i in range(8)], T(0))
a(f"v_mov_b32_dpp {T(1)}, {T(0)} quad_perm:[1,0,3,2] {DPP}")
a(f"v_cvt_pk_bf16_f32 {T(2)}, {T(0)}, {T(1)}")
a(f"v_lshlrev_b32 {T(3)}, 1, {vL}")
exec_set(0x55555555, 0x55555555)
a(f"ds_write_b32 {T(3)}, {T(2)} offset:{L_QB}")
exec_all()
a(f"v_and_b32 {T(4)}, 15, {vL}")
a(f"v_lshlrev_b32 {T(5)}, 3, {T(4)}")
a("s_waitcnt lgkmcnt(0)")
a(f"ds_read_b64 {vr(vG,2)}, {T(5)} offset:{L_QB}")
a(f"v_add_u32 {T(1)}, s62, {v(vOFF+0)}")
a(f"v_mov_b32 {v(vG+3)}, s15")
a("s_waitcnt lgkmcnt(0)")
exec_set(0xffff, 0)
a(f"global_store_dwordx4 {T(1)}, {vr(vG,4)}, s[56:57]")
exec_all()
a.label("L_noq")
stamp()
sec(2)
a("s_barrier")
for k in range(NA, 16):
    a(f"global_load_dword {v(vV+k)}, {v(vOFF+5)}, s[38:39] offset:{256*k} nt")
a("s_cmp_lg_u32 s26, 0")
a("s_cbranch_scc1 L_noqa")
exec_set(0xffff, 0)
a(f"global_store_dwordx4 {T(1)}, {vr(vG,4)}, s[58:59] sc1")
exec_all()
a("s_nop 1")
a(f"v_mov_b32 {v(vG+3)}, s23")
a.label("L_noqa")
a("s_cbranch_execz L_dry_done")
dry_enter(1, ["B0", "3", "4", "5", "6", "B5", "7", "B7"])
a.label("L_retB")
a("s_cmp_lg_u32 s26, 0")
a("s_cbranch_scc1 L_noqc")
a(f"s_waitcnt vmcnt({17-NA})")
a("s_branch L_noqb")
a.label("L_noqc")
a(f"s_waitcnt vmcnt({16-NA})")
a.label("L_noqb")
stamp()
a.raw("L_secB0:")
a("s_barrier")
a("s_barrier")
a(f"global_load_dwordx4 {vr(vW1,4)}, {v(vOFF+2)}, s[44:45]")
a(f"global_load_dwordx4 {vr(vWO,4)}, {v(vOFF+0)}, s[40:41] nt")
a(f"global_load_dwordx4 {vr(vWO+4,4)}, {v(vOFF+0)}, s[40:41] offset:1024 nt")
a(f"global_load_dwordx4 {vr(vW2,4)}, {v(vOFF+0)}, s[42:43] nt")
stamp()
a("s_barrier")
for i in range(4):
    a(f"ds_read_b128 {vr(vQ+4*i,4)}, {v(vOFF+4)} offset:{L_QI+64*i}")
a(f"v_mov_b32 {T(0)}, 0")
a(f"ds_read_b32 {T(0)}, {T(0)} offset:{L_MODE}")
stamp()
a("s_waitcnt lgkmcnt(0)")
a(f"v_readfirstlane_b32 s63, {T(0)}")
for i in range(4):
    c = "0" if i == 0 else vr(vD, 4)
    a(f"v_mfma_f32_16x16x32_bf16 {vr(vD,4)}, {vr(vK+4*i,4)}, {vr(vQ+4*i,4)}, {c}")
DD = [v(vD+r) for r in range(4)]
dppstep("v_add_f32", DD, "quad_perm:[1,0,3,2]")
dppstep("v_add_f32", DD, "quad_perm:[2,3,0,1]")
def round4():
    a(f"v_cvt_pk_bf16_f32 {T(0)}, {v(vD)}, {v(vD+1)}")
    a(f"v_cvt_pk_bf16_f32 {T(1)}, {v(vD+2)}, {v(vD+3)}")
    a(f"v_lshlrev_b32 {v(vD)}, 16, {T(0)}")
    a(f"v_and_b32 {v(vD+1)}, 0xffff0000, {T(0)}")
    a(f"v_lshlrev_b32 {v(vD+2)}, 16, {T(1)}")
    a(f"v_and_b32 {v(vD+3)}, 0xffff0000, {T(1)}")
round4()
for r in range(4):
    a(f"v_mul_f32 {v(vD+r)}, s54, {v(vD+r)}")
round4()
a(f"v_max3_f32 {T(2)}, {v(vD)}, {v(vD+1)}, {v(vD+2)}")
a(f"v_max_f32 {T(2)}, {T(2)}, {v(vD+3)}")
swapred("v_max_f32", [T(2)], [T(4)], 16)
swapred("v_max_f32", [T(2)], [T(4)], 32)
for r in range(4):
    a(f"v_sub_f32 {v(vD+r)}, {v(vD+r)}, {T(2)}")
for r in range(4):
    a(f"v_mul_f32 {v(vD+r)}, s53, {v(vD+r)}")
for r in range(4):
    a(f"v_exp_f32 {v(vD+r)}, {v(vD+r)}")
a(f"v_add_f32 {T(3)}, {v(vD)}, {v(vD+1)}")
a(f"v_add_f32 {T(4)}, {v(vD+2)}, {v(vD+3)}")
a(f"v_cvt_pk_bf16_f32 {T(6)}, {v(vD)}, {v(vD+1)}")
a(f"v_cvt_pk_bf16_f32 {T(7)}, {v(vD+2)}, {v(vD+3)}")
a(f"v_add_f32 {T(3)}, {T(3)}, {T(4)}")
swapred("v_add_f32", [T(3)], [T(4)], 16)
swapred("v_add_f32", [T(3)], [T(4)], 32)
for h in range(4):
    for kq in range(4):
        a(f"v_readlane_b32 s{sP0+h*8+2*kq}, {T(6)}, {kq*16+h*4}")
        a(f"v_readlane_b32 s{sP0+h*8+2*kq+1}, {T(7)}, {kq*16+h*4}")
a(f"v_lshlrev_b32 {T(8)}, 1, {vL}")
a("s_lshl_b32 s49, s26, 5")
a(f"v_add_u32 {T(8)}, s49, {T(8)}")
exec_set(0x1111, 0)
a(f"ds_write_b64 {T(8)}, {vr(4,2)} offset:{L_ML}")
exec_all()
sec(3)
OA = [[v(vA+2*h), v(vA+2*h+1)] for h in range(4)]
def pv(t):
    a(f"v_perm_b32 {T(10)}, {v(vV+2*t+1)}, {v(vV+2*t)}, {SEL_LO}")
    a(f"v_perm_b32 {T(11)}, {v(vV+2*t+1)}, {v(vV+2*t)}, {SEL_HI}")
    for h in range(4):
        if t == 0:
            a(f"v_dot2_f32_bf16 {OA[h][0]}, {T(10)}, s{sP0+h*8+t}, 0")
            a(f"v_dot2_f32_bf16 {OA[h][1]}, {T(11)}, s{sP0+h*8+t}, 0")
        else:
            a(f"v_dot2_f32_bf16 {OA[h][0]}, {T(10)}, s{sP0+h*8+t}, {OA[h][0]}")
            a(f"v_dot2_f32_bf16 {OA[h][1]}, {T(11)}, s{sP0+h*8+t}, {OA[h][1]}")
a("s_waitcnt vmcnt(12)")
for t in range(4):
    pv(t)
a("s_waitcnt vmcnt(4)")
stamp()
for t in range(4, 8):
    pv(t)
a("s_lshl_b32 s49, s26, 11")
a(f"v_add_u32 {T(8)}, s49, {v(vOFF+12)}")
for h in range(4):
    a(f"ds_write_b64 {T(8)}, {vr(vA+2*h,2)} offset:{L_O+512*h}")
a("s_waitcnt lgkmcnt(0)")
a("s_barrier")
sec(4)
a("s_lshr_b32 s49, s26, 1")
a("s_lshl_b32 s55, s49, 3")
a(f"v_mov_b32 {T(16)}, s55")
a(f"v_and_b32 {T(15)}, 127, {vTID}")
a(f"v_lshlrev_b32 {T(17)}, 2, {T(15)}")
a("s_lshl_b32 s55, s49, 9")
a(f"v_add_u32 {T(17)}, s55, {T(17)}")
for w in range(8):
    a(f"ds_read_b64 {vr(vK+2*w,2)}, {T(16)} offset:{L_ML+32*w}")
for w in range(8):
    a(f"ds_read_b32 {v(vV+w)}, {T(17)} offset:{L_O+2048*w}")
a("s_lshr_b32 s49, s26, 1")
a(f"s_lshl_b32 s49, s49, {CS+3}")
a("s_lshl_b32 s55, s28, 8")
a("s_add_u32 s49, s49, s55")
a(f"s_add_u32 s49, s49, {R_O}")
a(f"v_lshrrev_b32 {T(8)}, 4, {T(15)}")
a(f"v_lshlrev_b32 {T(8)}, {CS}, {T(8)}")
a(f"v_and_b32 {T(6)}, 15, {T(15)}")
a(f"v_lshlrev_b32 {T(6)}, 3, {T(6)}")
a(f"v_add3_u32 {T(8)}, {T(8)}, {T(6)}, s49")
a(f"v_lshlrev_b32 {T(9)}, {CS}, {T(15)}")
a(f"v_add_u32 {T(9)}, s49, {T(9)}")
a(f"v_mov_b32 {T(4)}, s22")
a(f"v_mov_b32 {T(5)}, s23")
a("s_waitcnt lgkmcnt(0)")
a(f"v_max3_f32 {T(2)}, {v(vK)}, {v(vK+2)}, {v(vK+4)}")
a(f"v_max3_f32 {T(2)}, {T(2)}, {v(vK+6)}, {v(vK+8)}")
a(f"v_max3_f32 {T(2)}, {T(2)}, {v(vK+10)}, {v(vK+12)}")
a(f"v_max_f32 {T(2)}, {T(2)}, {v(vK+14)}")
for w in range(8):
    a(f"v_sub_f32 {v(vK+2*w)}, {v(vK+2*w)}, {T(2)}")
for w in range(8):
    a(f"v_mul_f32 {v(vK+2*w)}, s53, {v(vK+2*w)}")
for w in range(8):
    a(f"v_exp_f32 {v(vK+2*w)}, {v(vK+2*w)}")
a(f"v_mul_f32 {T(3)}, {v(vK)}, {v(vK+1)}")
a(f"v_mul_f32 {v(vG)}, {v(vK)}, {v(vV)}")
for w in range(1, 8):
    a(f"v_fmac_f32 {T(3)}, {v(vK+2*w)}, {v(vK+2*w+1)}")
    a(f"v_fmac_f32 {v(vG)}, {v(vK+2*w)}, {v(vV+w)}")
a(f"v_mov_b32_dpp {v(vG+1)}, {v(vG)} quad_perm:[1,0,3,2] {DPP}")
a(f"v_cmp_gt_u32 vcc, 8, {T(15)}")
a("s_cmp_eq_u32 s63, 0")
a("s_cbranch_scc0 L_oslow")
exec_set(0x55555555, 0x55555555)
a(f"global_store_dwordx4 {T(8)}, {vr(vG,4)}, s[56:57]")
exec_all()
a("s_and_saveexec_b64 s[50:51], vcc")
a("s_cbranch_execz L_opub")
a(f"global_store_dwordx4 {T(9)}, {vr(4,4)}, s[56:57] offset:128")
a("s_branch L_opub")
a.label("L_oslow")
exec_set(0x55555555, 0x55555555)
a(f"global_store_dwordx4 {T(8)}, {vr(vG,4)}, s[58:59] sc1")
exec_all()
a("s_and_saveexec_b64 s[50:51], vcc")
a("s_cbranch_execz L_opub")
a(f"global_store_dwordx4 {T(9)}, {vr(4,4)}, s[58:59] offset:128 sc1")
a.label("L_opub")
exec_all()
stamp()
a("s_waitcnt vmcnt(4)")
HA = [v(vA+8+i) for i in range(4)]
a(f"v_permlane32_swap_b32 {v(vW1+0)}, {v(vW1+2)}")
a(f"v_permlane32_swap_b32 {v(vW1+1)}, {v(vW1+3)}")
for c in range(2):
    a(f"v_perm_b32 {T(2*c)}, {v(vW1+2+c)}, {v(vW1+c)}, {SEL_LO}")
    a(f"v_perm_b32 {T(2*c+1)}, {v(vW1+2+c)}, {v(vW1+c)}, {SEL_HI}")
for i in range(4):
    a(f"v_dot2_f32_bf16 {HA[i]}, {T(i)}, {vXH}, 0")
red32("v_add_f32", HA, [T(i) for i in range(4)])
a(f"v_lshrrev_b32 {T(0)}, 5, {vL}")
a(f"v_lshlrev_b32 {T(2)}, 4, {T(0)}")
a("s_lshl_b32 s49, s26, 5")
a(f"v_add_u32 {T(2)}, s49, {T(2)}")
exec_set(1, 1)
a(f"ds_write_b128 {T(2)}, {vr(vA+8,4)} offset:{L_HP}")
exec_all()
PM, PO = vP, vP + 2
sec(5)
a("s_waitcnt vmcnt(0) lgkmcnt(0)")
a("s_barrier")
a("s_lshl_b32 s55, s26, 2")
a(f"v_mov_b32 {T(14)}, s55")
for w in range(8):
    a(f"ds_read_b32 {v(vV+8+w)}, {T(14)} offset:{L_HP+32*w}")
a(f"ds_read_b64 {vr(PM,2)}, {v(vOFF+10)} offset:{L_OI+64}")
a(f"ds_read_b64 {vr(PO,2)}, {v(vOFF+11)} offset:{L_OI}")
a("s_waitcnt lgkmcnt(0)")
sum8([v(vV+8+i) for i in range(8)], T(16))
bf16r(T(16), T(16), T(17))
a(f"v_max_f32 {T(16)}, 0, {T(16)}")
a(f"v_and_b32 {T(16)}, s48, {T(16)}")
a(f"v_mov_b32 {T(0)}, {v(PM)}")
red32("v_max_f32", [T(0)], [T(1)])
a(f"v_sub_f32 {T(0)}, {v(PM)}, {T(0)}")
a(f"v_mul_f32 {T(0)}, s53, {T(0)}")
a(f"v_exp_f32 {T(0)}, {T(0)}")
a(f"v_mul_f32 {T(1)}, {T(0)}, {v(PM+1)}")
a(f"v_mul_f32 {T(2)}, {T(0)}, {v(PO)}")
a(f"v_mul_f32 {T(3)}, {T(0)}, {v(PO+1)}")
red32("v_add_f32", [T(1), T(2), T(3)], [T(4), T(5), T(6)])
a(f"v_rcp_f32 {T(4)}, {T(1)}")
a(f"v_fma_f32 {T(5)}, -{T(1)}, {T(4)}, 1.0")
a(f"v_fma_f32 {T(4)}, {T(5)}, {T(4)}, {T(4)}")
a(f"v_mul_f32 {T(2)}, {T(2)}, {T(4)}")
a(f"v_mul_f32 {T(3)}, {T(3)}, {T(4)}")
a(f"v_cvt_pk_bf16_f32 {T(0)}, {T(2)}, {T(3)}")
for c in range(4):
    a(f"v_perm_b32 {T(2+2*c)}, {v(vWO+4+c)}, {v(vWO+c)}, {SEL_LO}")
    a(f"v_perm_b32 {T(3+2*c)}, {v(vWO+4+c)}, {v(vWO+c)}, {SEL_HI}")
for i in range(8):
    a(f"v_dot2_f32_bf16 {v(vA+i)}, {T(2+i)}, {T(0)}, 0")
for c in range(4):
    a(f"v_lshlrev_b32 {v(vA+8+2*c)}, 16, {v(vW2+c)}")
    a(f"v_and_b32 {v(vA+9+2*c)}, 0xffff0000, {v(vW2+c)}")
for i in range(8):
    a(f"v_mul_f32 {v(vA+8+i)}, {v(vA+8+i)}, {T(16)}")
a(f"v_lshlrev_b32 {T(10)}, 5, {vL}")
a("s_lshl_b32 s49, s26, 12")
a(f"v_add_u32 {T(10)}, s49, {T(10)}")
a(f"ds_write_b128 {T(10)}, {vr(vA,4)} offset:{L_AB}")
a(f"ds_write_b128 {T(10)}, {vr(vA+4,4)} offset:{L_AB+16}")
a(f"ds_write_b128 {T(10)}, {vr(vA+8,4)} offset:{L_AB+2048}")
a(f"ds_write_b128 {T(10)}, {vr(vA+12,4)} offset:{L_AB+2048+16}")
a("s_waitcnt lgkmcnt(0)")
a("s_barrier")
a(f"v_lshlrev_b32 {T(16)}, 2, {vTID}")
for w in range(8):
    a(f"ds_read_b32 {v(vK+w)}, {T(16)} offset:{L_AB+4096*w}")
    a(f"ds_read_b32 {v(vK+8+w)}, {T(16)} offset:{L_AB+4096*w+2048}")
a(f"v_lshrrev_b32 {T(6)}, 4, {vTID}")
a(f"v_lshlrev_b32 {T(6)}, {CS}, {T(6)}")
a(f"v_and_b32 {T(7)}, 15, {vTID}")
a(f"v_lshlrev_b32 {T(7)}, 4, {T(7)}")
a("s_lshl_b32 s49, s28, 8")
a(f"s_add_u32 s49, s49, {R_FA}")
a(f"v_add3_u32 {T(6)}, {T(6)}, {T(7)}, s49")
a("s_waitcnt lgkmcnt(0)")
sum8([v(vK+i) for i in range(8)], v(vG))
sum8([v(vK+8+i) for i in range(8)], v(vG+1))
a("s_cmp_eq_u32 s63, 0")
a("s_cbranch_scc0 L_faslow")
a(f"global_store_dwordx4 {T(6)}, {vr(vG,4)}, s[56:57]")
a("s_branch L_fapub")
a.label("L_faslow")
a(f"global_store_dwordx4 {T(6)}, {vr(vG,4)}, s[58:59] sc1")
a.label("L_fapub")
if STAMPS:
    a("s_cbranch_execz L_dry_done")
    a(f"s_cmp_lg_u32 s26, {STW}")
    a("s_cbranch_scc1 L_end")
    stamp()
    a(f"v_writelane_b32 {vST}, s52, 31")
    a("s_lshl_b32 s49, s2, 7")
    a(f"s_add_u32 s49, s49, {STAMP_OFF+0x100000:#x}")
    a(f"v_add_u32 {T(10)}, s49, {v(vOFF+5)}")
    exec_set(0xffffffff, 0)
    a(f"global_store_dword {T(10)}, {vST}, s[24:25]")
    exec_all()
a("s_cbranch_execz L_dry_done")
a("s_branch L_end")
a.label("L_comm")
a.raw("L_sec6:")
for i in range(4):
    a(f"v_mov_b32 {T(12+i)}, 0")
a("s_lshl_b32 s49, s28, 8")
a(f"s_add_u32 s50, s49, {R_O}")
a(f"s_add_u32 s51, s49, {R_FA}")
def prestore(sreg):
    a(f"v_add_u32 {T(11)}, {sreg}, {v(vOFF+3)}")
    for k in range(8):
        if k:
            a(f"v_add_u32 {T(11)}, {4<<CS}, {T(11)}")
        a(f"global_store_dwordx4 {T(11)}, {vr(14,4)}, s[56:57]")
a("s_waitcnt vmcnt(0)")
a(f"v_readfirstlane_b32 s22, {vE}")
a("s_add_u32 s22, s22, 1")
a("s_xor_b32 s23, s22, 0xa5c3a5c0")
a("s_xor_b32 s15, s23, s14")
a(f"v_mov_b32 {v(vG+2)}, s22")
a(f"v_mov_b32 {v(vG+3)}, s23")
stamp()
a("s_barrier")
a("s_barrier")
prestore("s50")
prestore("s51")
a("s_barrier")
QSH[0] = True
inbox_loads(v(vOFF+0), 8)
a("s_barrier")
a("s_waitcnt vmcnt(0)")
stamp()
sec("B5")
poll_loop("q", v(vOFF+0), 8, first_issued=True, tagcheck=tagcheck_q)
QSH[0] = False
for k in range(8):
    a(f"ds_write_b64 {v(vOFF+12)}, {vr(vP+4*k,2)} offset:{L_QI+512*k}")
a(f"v_cmp_ne_u32 vcc, 0, {T(3)}")
a("s_cmp_eq_u64 vcc, 0")
a("s_cselect_b32 s63, 0, 1")
a(f"v_mov_b32 {T(0)}, 0")
a(f"v_mov_b32 {T(1)}, s63")
a(f"ds_write_b32 {T(0)}, {T(1)} offset:{L_MODE}")
a("s_cmp_eq_u32 s63, 0")
a("s_cselect_b32 s64, s30, s34")
a("s_cselect_b32 s65, s31, s35")
a("s_cselect_b32 s66, s32, s60")
a("s_cselect_b32 s67, s33, s61")
a("s_waitcnt lgkmcnt(0)")
stamp()
a("s_barrier")
sec(7)
a("s_barrier")
stamp()
SELB[0] = True
poll_loop("o", v(vOFF+14), 8, dual=False)
for k in range(8):
    a(f"ds_write_b64 {v(vOFF+13)}, {vr(vP+4*k,2)} offset:{L_OI+512*k}")
a("s_waitcnt lgkmcnt(0)")
stamp()
a("s_barrier")
a("s_barrier")
stamp()
sec("B7")
poll_loop("fa", v(vOFF+15), 8, dual=False)
SELB[0] = False
stamp()
for c in range(2):
    sum8([v(vP+4*k+c) for k in range(8)], v(vG+c))
GG = [v(vG), v(vG+1)]
swapred("v_add_f32", GG, [T(0), T(1)], 16)
swapred("v_add_f32", GG, [T(0), T(1)], 32)
a("s_lshl_b32 s49, s27, 8")
a("s_add_u32 s49, s49, s3")
a(f"s_add_u32 s49, s49, {R_FB}")
a(f"v_add_u32 {T(0)}, s49, {v(vOFF+0)}")
exec_set(0xffff, 0)
a(f"global_store_dwordx4 {T(0)}, {vr(vG,4)}, s[24:25] sc1")
exec_all()
a("s_and_b32 s49, s28, 7")
a("s_cmp_lg_u32 s49, s27")
a("s_cbranch_scc1 L_fin")
a(f"v_lshlrev_b32 {T(10)}, 1, {vL}")
a("s_lshl_b32 s49, s28, 5")
a(f"v_add_u32 {T(10)}, s49, {T(10)}")
exec_set(0xffff, 0)
a(f"global_load_ushort {T(12)}, {T(10)}, s[4:5]")
exec_all()
a(f"v_add_u32 {T(11)}, {R_FB}, {v(vOFF+0)}")
poll_loop("fb", T(11), 2, dual=False)
a(f"v_add_f32 {v(vG)}, {v(vP)}, {v(vP+4)}")
a(f"v_add_f32 {v(vG+1)}, {v(vP+1)}, {v(vP+5)}")
swapred("v_add_f32", GG, [T(0), T(1)], 16)
swapred("v_add_f32", GG, [T(0), T(1)], 32)
a(f"v_cvt_pk_bf16_f32 {T(0)}, {v(vG)}, {v(vG+1)}")
a(f"v_lshlrev_b32 {T(1)}, 16, {T(0)}")
a(f"v_and_b32 {T(2)}, 0xffff0000, {T(0)}")
a(f"v_lshlrev_b32 {T(3)}, 16, {T(12)}")
a(f"v_add_f32 {T(1)}, {T(1)}, {T(3)}")
bf16r(T(1), T(1), T(4))
a(f"v_add_f32 {T(1)}, {T(1)}, {T(2)}")
a(f"v_cvt_pk_bf16_f32 {T(0)}, {T(1)}, {T(1)}")
exec_set(0xffff, 0)
a(f"global_store_short {T(10)}, {T(0)}, s[20:21]")
exec_all()
a("s_cmp_lg_u32 s2, 0")
a("s_cbranch_scc1 L_fin")
a(f"v_mov_b32 {T(1)}, {EPOCH:#x}")
a(f"v_mov_b32 {T(2)}, s22")
exec_set(1, 0)
a(f"global_store_dword {T(1)}, {T(2)}, s[24:25]")
exec_all()
a.label("L_fin")
a("s_cbranch_execz L_dry_done")
def stamp_store(extra):
    a(f"v_writelane_b32 {vST}, s52, 31")
    a("s_lshl_b32 s49, s2, 7")
    a(f"s_add_u32 s49, s49, {STAMP_OFF+extra:#x}")
    a(f"v_add_u32 {T(10)}, s49, {v(vOFF+5)}")
    exec_set(0xffffffff, 0)
    a(f"global_store_dword {T(10)}, {vST}, s[24:25]")
    exec_all()
if STAMPS:
    stamp()
    stamp_store(0)
a.label("L_end")
a("s_endpgm")
a.raw(f""".section .rodata,"a"
.p2align 6
.amdhsa_kernel {NAME}_kernel
  .amdhsa_next_free_vgpr {NVGPR}
  .amdhsa_next_free_sgpr 102
  .amdhsa_accum_offset {NVGPR}
  .amdhsa_group_segment_fixed_size 0
  .amdhsa_kernarg_size 88
  .amdhsa_user_sgpr_count 2
  .amdhsa_user_sgpr_kernarg_segment_ptr 1
  .amdhsa_system_sgpr_workgroup_id_x 1
  .amdhsa_float_denorm_mode_32 3
  .amdhsa_float_denorm_mode_16_64 3
.end_amdhsa_kernel""")

out = sys.argv[1]
open(out, "w").write(a.text())
```

```python
import sys
from asmlib import Asm

NAME = "parallel_sum__sliding_block_cached__dense_activation_relu__decode"
STAMPS = "--stamps" in sys.argv
DBGT = "--dbgt" in sys.argv
STW = 7 if "--w7" in sys.argv else 0
NA = int([x for x in sys.argv if x.startswith("--na=")][0][5:]) if any(x.startswith("--na=") for x in sys.argv) else 8
N1 = 8
SPIN_CAP = 400000

L_XN = 0
L_QP = 1024
L_QB = 3072
L_MODE = 3200
L_HP = 3328
L_ML = 3584
L_O = 4096
L_AB = 20480
L_QI = 53248
L_OI = 57344
LDS_BYTES = 90112

R_Q = 0
R_O = 8192
R_FA = 16384
R_FB = 24576
R_B = 32768
SH = 16
CS = SH + 3
STAMP_OFF = 20 << 20
EPOCH = 24 << 20

a = Asm()

vTID, vL = "v0", "v1"
def T(i): return f"v{2+i}"
vX = 20
vST = "v24"
vXP = "v25"
vWQ = 28
vW1 = 36
vK = 40
vV = 56
vWO = 72
vW2 = 80
vQ = 84
vD = 100
vA = 104
vOFF = 120
vP = 40
vXH = "v26"
vE = "v27"
vG = 136
NVGPR = 140
def v(i): return f"v{i}"
def vr(i, n): return f"v[{i}:{i+n-1}]"

SEL_LO, SEL_HI = "s46", "s47"
sP0 = 68
nstamp = [0]
def stamp():
    if not STAMPS: return
    i = nstamp[0]; nstamp[0] += 1
    a("s_memrealtime s[100:101]")
    a("s_waitcnt lgkmcnt(0)")
    a(f"v_writelane_b32 {vST}, s100, {i}")

DPP = "row_mask:0xf bank_mask:0xf"
def dppstep(op, regs, pat):
    for r in regs:
        a(f"{op}_dpp {r}, {r}, {r} {pat} {DPP}")
def red16(op, regs):
    for pat in ("quad_perm:[1,0,3,2]", "quad_perm:[2,3,0,1]", "row_half_mirror", "row_mirror"):
        dppstep(op, regs, pat)
def swapred(op, regs, tmps, which):
    for r, t in zip(regs, tmps):
        a(f"v_mov_b32 {t}, {r}")
    for r, t in zip(regs, tmps):
        a(f"v_permlane{which}_swap_b32 {r}, {t}")
    for r, t in zip(regs, tmps):
        a(f"{op} {r}, {r}, {t}")
def red32(op, regs, tmps):
    red16(op, regs); swapred(op, regs, tmps, 16)
def red64(op, regs, tmps):
    red32(op, regs, tmps); swapred(op, regs, tmps, 32)
def bf16r(dst, src, tmp):
    a(f"v_cvt_pk_bf16_f32 {tmp}, {src}, {src}")
    a(f"v_lshlrev_b32 {dst}, 16, {tmp}")
def exec_set(lo, hi):
    a(f"s_and_b32 exec_lo, s16, {lo:#x}")
    a(f"s_and_b32 exec_hi, s17, {hi:#x}")
def exec_all():
    a("s_mov_b64 exec, s[16:17]")
def sec(k):
    a("s_cbranch_execz L_dry_done")
    a._close()
    a.raw(f"L_sec{k}:")
def dry_enter(which, names):
    a(f"s_mov_b32 s19, {which}")
    a("s_mov_b32 s18, s26")
    a("s_mov_b64 s[16:17], 0")
    a("s_mov_b64 exec, 0")
    a("s_mov_b32 s26, 0")
    for k in range(1, 8):
        a(f"s_cmp_eq_u32 s18, {k}")
        a(f"s_cbranch_scc1 L_sec{names[k]}")
    a(f"s_branch L_sec{names[0]}")
def add64(dst, base, off):
    a(f"s_add_u32 s{dst}, s{base}, {off}")
    a(f"s_addc_u32 s{dst+1}, s{base+1}, 0")
def sum8(regs, dst):
    r = regs
    a(f"v_add_f32 {r[0]}, {r[0]}, {r[1]}")
    a(f"v_add_f32 {r[2]}, {r[2]}, {r[3]}")
    a(f"v_add_f32 {r[4]}, {r[4]}, {r[5]}")
    a(f"v_add_f32 {r[6]}, {r[6]}, {r[7]}")
    a(f"v_add_f32 {r[0]}, {r[0]}, {r[2]}")
    a(f"v_add_f32 {r[4]}, {r[4]}, {r[6]}")
    a(f"v_add_f32 {dst}, {r[0]}, {r[4]}")
SELB = [False]
QSH = [False]
def inbox_loads(offreg, n, b=False):
    if QSH[0]:
        base = "s[58:59]" if b else "s[56:57]"
        for k in range(n):
            off = v(vOFF+0) if k < 4 else v(vOFF+6)
            a(f"global_load_dwordx4 {vr(vP+4*k,4)}, {off}, {base} offset:{1024*(k%4)} sc1")
        return
    lo, hi = ("s[34:35]", "s[60:61]") if b else ("s[30:31]", "s[32:33]")
    if SELB[0]:
        lo, hi = "s[64:65]", "s[66:67]"
    for k in range(n):
        base = lo if k < 4 else hi
        a(f"global_load_dwordx4 {vr(vP+4*k,4)}, {offreg}, {base} offset:{1024*(k%4)} sc1")
def tagcheck(n):
    a(f"v_xor_b32 {T(0)}, s22, {v(vP+2)}")
    a(f"v_xor_b32 {T(1)}, s23, {v(vP+3)}")
    a(f"v_or_b32 {T(0)}, {T(0)}, {T(1)}")
    for k in range(1, n):
        a(f"v_xor_b32 {T(1)}, s22, {v(vP+4*k+2)}")
        a(f"v_xor_b32 {T(2)}, s23, {v(vP+4*k+3)}")
        a(f"v_or3_b32 {T(0)}, {T(0)}, {T(1)}, {T(2)}")
    a(f"v_cmp_ne_u32 vcc, 0, {T(0)}")
    a("s_cmp_eq_u64 vcc, 0")
def tagcheck_q(n):
    for k in range(n):
        a(f"v_xor_b32 {T(1)}, s22, {v(vP+4*k+2)}")
        a(f"v_xor_b32 {T(2)}, s15, {v(vP+4*k+3)}")
        if k == 0:
            a(f"v_mov_b32 {T(3)}, {T(2)}")
            a(f"v_mov_b32 {T(0)}, {T(1)}")
        else:
            a(f"v_or_b32 {T(3)}, {T(3)}, {T(2)}")
            a(f"v_or_b32 {T(0)}, {T(0)}, {T(1)}")
    a(f"v_and_b32 {T(2)}, -8, {T(3)}")
    a(f"v_or_b32 {T(0)}, {T(0)}, {T(2)}")
    a(f"v_cmp_ne_u32 vcc, 0, {T(0)}")
    a("s_cmp_eq_u64 vcc, 0")
def spin_guard():
    a("s_add_u32 s52, s52, 1")
    a(f"s_cmp_gt_u32 s52, {SPIN_CAP}")
    a("s_cbranch_scc1 L_end")
def poll_loop(name, offreg, n, first_issued=False, dual=True, tagcheck=tagcheck):
    if first_issued:
        tagcheck(n)
        a(f"s_cbranch_scc1 L_{name}_ok")
    a.label(f"L_{name}_loop")
    inbox_loads(offreg, n)
    spin_guard()
    a("s_waitcnt vmcnt(0)")
    tagcheck(n)
    if not dual:
        a(f"s_cbranch_scc0 L_{name}_loop")
    else:
        a(f"s_cbranch_scc1 L_{name}_ok")
        a("s_and_b32 s49, s52, 3")
        a("s_cmp_lg_u32 s49, 3")
        a(f"s_cbranch_scc1 L_{name}_loop")
        inbox_loads(offreg, n, b=True)
        a("s_waitcnt vmcnt(0)")
        tagcheck(n)
        a(f"s_cbranch_scc0 L_{name}_loop")
    a.label(f"L_{name}_ok")

a.raw(f"""; Kernarg layout: x, k_cache, v_cache, wq, wo, B_x, w1, w2, out, debug, ws (8-byte pointers)
; @launch grid=(256,1,1) block=(576,1,1) lds={LDS_BYTES}
.amdgcn_target "amdgcn-amd-amdhsa--gfx950"
.text
.globl {NAME}_kernel
.p2align 8
.type {NAME}_kernel,@function
{NAME}_kernel:""")

a("s_cmp_ge_u32 s2, 256")
a("s_cbranch_scc1 L_end")
a("s_load_dwordx16 s[4:19], s[0:1], 0")
a("s_load_dwordx4 s[20:23], s[0:1], 64")
a("s_load_dwordx2 s[24:25], s[0:1], 80")
if DBGT:
    a("s_memrealtime s[98:99]")
stamp()
a(f"v_and_b32 {vL}, 63, {vTID}")
a(f"v_lshrrev_b32 {T(0)}, 6, {vTID}")
a(f"v_readfirstlane_b32 s26, {T(0)}")
a("s_and_b32 s27, s2, 7")
a("s_lshr_b32 s28, s2, 3")
a(f"v_lshlrev_b32 {v(vOFF+0)}, 4, {vL}")
a(f"v_lshrrev_b32 {T(6)}, 3, {vL}")
a(f"v_and_b32 {T(7)}, 7, {vL}")
a(f"v_lshlrev_b32 {v(vOFF+1)}, 14, {T(6)}")
a(f"v_lshl_add_u32 {v(vOFF+1)}, {T(7)}, 4, {v(vOFF+1)}")
a(f"v_mov_b32 {T(8)}, {EPOCH:#x}")
a(f"v_and_b32 {T(9)}, 15, {vL}")
a(f"v_lshrrev_b32 {T(10)}, 4, {vL}")
a(f"v_lshlrev_b32 {v(vOFF+3)}, {CS}, {T(10)}")
a(f"v_lshl_add_u32 {v(vOFF+3)}, {T(9)}, 4, {v(vOFF+3)}")
a("s_and_b32 s49, s28, 7")
a("s_lshr_b32 s49, s49, 1")
a("s_lshl_b32 s49, s49, 2")
a("s_lshr_b32 s55, s28, 3")
a("s_add_u32 s49, s49, s55")
a("s_lshl_b32 s49, s49, 9")
a("s_and_b32 s55, s28, 1")
a("s_lshl_b32 s55, s55, 8")
a("s_add_u32 s62, s49, s55")
a("s_lshr_b32 s49, s28, 3")
a("s_lshl_b32 s49, s49, 7")
a("s_lshl_b32 s55, s26, 4")
a("s_add_u32 s49, s49, s55")
a("s_lshl_b32 s49, s49, 13")
a("s_lshl_b32 s55, s27, 10")
a("s_add_u32 s49, s49, s55")
a("s_and_b32 s55, s28, 7")
a("s_lshl_b32 s55, s55, 7")
a("s_add_u32 s49, s49, s55")
a(f"s_lshl_b32 s55, s27, {SH}")
a("s_waitcnt lgkmcnt(0)")
a("s_getreg_b32 s14, hwreg(HW_REG_XCC_ID, 0, 3)")
add64(56, 24, "s55")
add64(64, 10, "s49")
add64(66, 64, 8192)
a(f"global_load_dword {vE}, {T(8)}, s[24:25]")
a("s_cmp_eq_u32 s26, 8")
a("s_cbranch_scc1 L_nold")
a(f"global_load_dwordx4 {vr(vX,4)}, {v(vOFF+0)}, s[4:5]")
a(f"global_load_dwordx4 {vr(vWQ,4)}, {v(vOFF+1)}, s[64:65] nt")
a(f"global_load_dwordx4 {vr(vWQ+4,4)}, {v(vOFF+1)}, s[66:67] nt")
a.label("L_nold")
a(f"v_lshlrev_b32 {v(vOFF+4)}, 8, {T(9)}")
a(f"v_lshl_add_u32 {v(vOFF+4)}, {T(10)}, 4, {v(vOFF+4)}")
a("s_lshl_b32 s50, s27, 24")
a("s_add_u32 s50, s50, 0xf00000")
a("s_lshl_b32 s55, s28, 15")
a("s_add_u32 s50, s50, s55")
a("s_lshl_b32 s55, s26, 12")
a("s_add_u32 s50, s50, s55")
add64(36, 6, "s50")
add64(38, 8, "s50")
add64(58, 56, R_B)
a(f"s_mov_b32 {SEL_LO}, 0x05040100")
a(f"s_mov_b32 {SEL_HI}, 0x07060302")
a("s_mov_b32 s53, 0x3fb8aa3b")
a("s_mov_b32 s54, 0x3db504f3")
a("s_mov_b32 s52, 0")
a("s_mul_i32 s29, s27, 28")
a("s_add_u32 s29, s29, s28")
a("s_cmp_lt_u32 s28, 28")
a("s_cselect_b32 s29, s29, 0")
a("s_cselect_b32 s48, -1, 0")
a(f"s_lshl_b32 s49, s2, {SH}")
add64(30, 24, "s49")
add64(32, 30, 4096)
add64(34, 30, R_B)
add64(60, 30, R_B + 4096)
a("s_mul_i32 s49, s26, 229376")
a("s_lshl_b32 s55, s29, 4")
a("s_add_u32 s49, s49, s55")
add64(44, 16, "s49")
a(f"v_and_b32 {T(6)}, 31, {vL}")
a(f"v_lshrrev_b32 {T(7)}, 5, {vL}")
a(f"v_lshl_add_u32 {T(8)}, {T(6)}, 1, {T(7)}")
a("s_movk_i32 s55, 3584")
a(f"v_mul_lo_u32 {v(vOFF+2)}, {T(8)}, s55")
a("s_lshl_b32 s49, s27, 2")
a("s_lshr_b32 s55, s28, 3")
a("s_add_u32 s49, s49, s55")
a("s_lshl_b32 s49, s49, 7")
a("s_and_b32 s55, s28, 7")
a("s_lshl_b32 s55, s55, 4")
a("s_add_u32 s49, s49, s55")
a("s_lshl_b32 s55, s26, 1")
a("s_add_u32 s49, s49, s55")
a("s_lshl_b32 s49, s49, 10")
add64(40, 12, "s49")
a("s_lshl_b32 s49, s29, 3")
a("s_add_u32 s49, s49, s26")
a("s_lshl_b32 s49, s49, 10")
add64(42, 18, "s49")
a(f"v_lshlrev_b32 {v(vOFF+5)}, 2, {vL}")
a(f"v_lshlrev_b32 {v(vOFF+10)}, 7, {T(6)}")
a("s_lshl_b32 s49, s26, 3")
a(f"v_add_u32 {v(vOFF+11)}, s49, {v(vOFF+10)}")
a("s_lshl_b32 s49, s28, 3")
a("s_and_b32 s55, s28, 7")
a("s_add_u32 s49, s49, s55")
a(f"s_lshl_b32 s3, s49, {SH}")
a(f"v_min_u32 {T(11)}, 8, {T(9)}")
a(f"v_lshlrev_b32 {T(12)}, 8, {T(10)}")
a(f"v_lshl_add_u32 {T(12)}, {T(11)}, 4, {T(12)}")
a(f"v_add_u32 {v(vOFF+14)}, {R_O}, {T(12)}")
a(f"v_lshlrev_b32 {T(12)}, 7, {T(10)}")
a(f"v_lshl_add_u32 {v(vOFF+13)}, {T(11)}, 3, {T(12)}")
a(f"v_add_u32 {v(vOFF+15)}, {R_FA}, {v(vOFF+0)}")
a(f"v_lshlrev_b32 {v(vOFF+12)}, 3, {vL}")
a(f"v_add_u32 {v(vOFF+6)}, 4096, {v(vOFF+0)}")

a("s_mov_b64 s[16:17], -1")
a("s_cmp_eq_u32 s26, 8")
a("s_cbranch_scc1 L_comm")
a.guard = True
dry_enter(0, ["0", "A1", "A2", "A3", "A4", "A5", "1", "A7"])
a.label("L_dry_done")
a("s_mov_b64 s[16:17], -1")
a("s_mov_b64 exec, -1")
a("s_mov_b32 s26, s18")
a("s_mov_b32 s52, 0")
a("s_cmp_eq_u32 s19, 1")
a("s_cbranch_scc1 L_retB")
a.raw("L_sec0:")
a("s_waitcnt vmcnt(2)")
stamp()
for i in range(4):
    a(f"global_load_dwordx4 {vr(vK+4*i,4)}, {v(vOFF+4)}, s[36:37] offset:{64*i} nt")
for k in range(NA):
    a(f"global_load_dword {v(vV+k)}, {v(vOFF+5)}, s[38:39] offset:{256*k} nt")
a(f"v_readfirstlane_b32 s22, {vE}")
a("s_add_u32 s22, s22, 1")
a("s_xor_b32 s23, s22, 0xa5c3a5c0")
a("s_xor_b32 s15, s23, s14")
a(f"v_mov_b32 {v(vG+2)}, s22")
a(f"v_mov_b32 {v(vG+3)}, s23")
for i in range(4):
    a(f"v_lshlrev_b32 {T(2*i)}, 16, {v(vX+i)}")
    a(f"v_and_b32 {T(2*i+1)}, 0xffff0000, {v(vX+i)}")
a(f"v_add_f32 {T(8)}, {T(0)}, {T(1)}")
a(f"v_add_f32 {T(9)}, {T(2)}, {T(3)}")
a(f"v_add_f32 {T(10)}, {T(4)}, {T(5)}")
a(f"v_add_f32 {T(11)}, {T(6)}, {T(7)}")
a(f"v_add_f32 {T(8)}, {T(8)}, {T(9)}")
a(f"v_add_f32 {T(10)}, {T(10)}, {T(11)}")
a(f"v_add_f32 {T(8)}, {T(8)}, {T(10)}")
sec("A1")
red64("v_add_f32", [T(8)], [T(9)])
a(f"v_mul_f32 {T(8)}, 0x3b000000, {T(8)}")
a(f"v_sub_f32 {T(9)}, {T(0)}, {T(8)}")
a(f"v_mul_f32 {T(10)}, {T(9)}, {T(9)}")
for i in range(1, 8):
    a(f"v_sub_f32 {T(9)}, {T(i)}, {T(8)}")
    a(f"v_fmac_f32 {T(10)}, {T(9)}, {T(9)}")
sec("A2")
red64("v_add_f32", [T(10)], [T(9)])
a(f"v_mul_f32 {T(10)}, 0x3b000000, {T(10)}")
bf16r(T(8), T(8), T(9))
bf16r(T(10), T(10), T(9))
a(f"v_add_f32 {T(10)}, 0x3727c5ac, {T(10)}")
bf16r(T(10), T(10), T(9))
sec("A3")
a(f"v_sqrt_f32 {T(10)}, {T(10)}")
bf16r(T(10), T(10), T(9))
a(f"v_rcp_f32 {T(11)}, {T(10)}")
a(f"v_fma_f32 {T(9)}, -{T(10)}, {T(11)}, 1.0")
a(f"v_fma_f32 {T(11)}, {T(9)}, {T(11)}, {T(11)}")
for i in range(8):
    a(f"v_sub_f32 {T(i)}, {T(i)}, {T(8)}")
for i in range(4):
    a(f"v_cvt_pk_bf16_f32 {T(12+i)}, {T(2*i)}, {T(2*i+1)}")
for i in range(4):
    a(f"v_lshlrev_b32 {T(2*i)}, 16, {T(12+i)}")
    a(f"v_and_b32 {T(2*i+1)}, 0xffff0000, {T(12+i)}")
sec("A4")
for i in range(8):
    a(f"v_mul_f32 {T(i)}, {T(i)}, {T(11)}")
for i in range(4):
    a(f"v_cvt_pk_bf16_f32 {T(12+i)}, {T(2*i)}, {T(2*i+1)}")
a(f"ds_write_b128 {v(vOFF+0)}, {vr(14,4)} offset:{L_XN}")
a(f"v_lshrrev_b32 {T(0)}, 3, {vL}")
a("s_lshr_b32 s49, s28, 3")
a("s_lshl_b32 s49, s49, 6")
a("s_lshl_b32 s55, s26, 3")
a("s_add_u32 s49, s49, s55")
a(f"v_add_lshl_u32 {T(0)}, {T(0)}, s49, 2")
a(f"v_and_b32 {T(1)}, 31, {vL}")
a("s_lshl_b32 s49, s26, 5")
a(f"v_add_lshl_u32 {T(1)}, {T(1)}, s49, 2")
a("s_waitcnt lgkmcnt(0)")
a(f"ds_read_b32 {vXP}, {T(0)} offset:{L_XN}")
a(f"ds_read_b32 {vXH}, {T(1)} offset:{L_XN}")

sec(1)
a(f"s_waitcnt vmcnt({4+NA}) lgkmcnt(0)")
stamp()
QA = [v(vA+i) for i in range(8)]
for c in range(4):
    a(f"v_perm_b32 {T(2*c)}, {v(vWQ+4+c)}, {v(vWQ+c)}, {SEL_LO}")
    a(f"v_perm_b32 {T(2*c+1)}, {v(vWQ+4+c)}, {v(vWQ+c)}, {SEL_HI}")
for i in range(8):
    a(f"v_dot2_f32_bf16 {QA[i]}, {T(i)}, {vXP}, 0")
dppstep("v_add_f32", QA, "row_ror:8")
sec("A5")
swapred("v_add_f32", QA, [T(i) for i in range(8)], 16)
swapred("v_add_f32", QA, [T(i) for i in range(8)], 32)
a(f"v_lshlrev_b32 {T(1)}, 5, {vL}")
a("s_lshl_b32 s49, s26, 8")
a(f"v_add_u32 {T(1)}, s49, {T(1)}")
exec_set(0xff, 0)
a(f"ds_write_b128 {T(1)}, {vr(vA,4)} offset:{L_QP}")
a(f"ds_write_b128 {T(1)}, {vr(vA+4,4)} offset:{L_QP+16}")
exec_all()
a("s_waitcnt lgkmcnt(0)")
a("s_barrier")
stamp()
sec("A7")
a("s_cmp_lg_u32 s26, 0")
a("s_cbranch_scc1 L_noq")
for w in range(8):
    a(f"ds_read_b32 {T(w)}, {v(vOFF+5)} offset:{L_QP+256*w}")
a("s_waitcnt lgkmcnt(0)")
sum8([T(i) for i in range(8)], T(0))
a(f"v_mov_b32_dpp {T(1)}, {T(0)} quad_perm:[1,0,3,2] {DPP}")
a(f"v_cvt_pk_bf16_f32 {T(2)}, {T(0)}, {T(1)}")
a(f"v_lshlrev_b32 {T(3)}, 1, {vL}")
exec_set(0x55555555, 0x55555555)
a(f"ds_write_b32 {T(3)}, {T(2)} offset:{L_QB}")
exec_all()
a(f"v_and_b32 {T(4)}, 15, {vL}")
a(f"v_lshlrev_b32 {T(5)}, 3, {T(4)}")
a("s_waitcnt lgkmcnt(0)")
a(f"ds_read_b64 {vr(vG,2)}, {T(5)} offset:{L_QB}")
a(f"v_add_u32 {T(1)}, s62, {v(vOFF+0)}")
a(f"v_mov_b32 {v(vG+3)}, s15")
a("s_waitcnt lgkmcnt(0)")
exec_set(0xffff, 0)
a(f"global_store_dwordx4 {T(1)}, {vr(vG,4)}, s[56:57]")
exec_all()
a.label("L_noq")
stamp()
sec(2)
a("s_barrier")
for k in range(NA, 16):
    a(f"global_load_dword {v(vV+k)}, {v(vOFF+5)}, s[38:39] offset:{256*k} nt")
a("s_cmp_lg_u32 s26, 0")
a("s_cbranch_scc1 L_noqa")
exec_set(0xffff, 0)
a(f"global_store_dwordx4 {T(1)}, {vr(vG,4)}, s[58:59] sc1")
exec_all()
a("s_nop 1")
a(f"v_mov_b32 {v(vG+3)}, s23")
a.label("L_noqa")
a("s_cbranch_execz L_dry_done")
dry_enter(1, ["B0", "3", "4", "5", "6", "B5", "7", "B7"])
a.label("L_retB")
a("s_cmp_lg_u32 s26, 0")
a("s_cbranch_scc1 L_noqc")
a(f"s_waitcnt vmcnt({17-NA})")
a("s_branch L_noqb")
a.label("L_noqc")
a(f"s_waitcnt vmcnt({16-NA})")
a.label("L_noqb")
stamp()
a.raw("L_secB0:")
a("s_barrier")
a("s_barrier")
a(f"global_load_dwordx4 {vr(vW1,4)}, {v(vOFF+2)}, s[44:45]")
a(f"global_load_dwordx4 {vr(vWO,4)}, {v(vOFF+0)}, s[40:41] nt")
a(f"global_load_dwordx4 {vr(vWO+4,4)}, {v(vOFF+0)}, s[40:41] offset:1024 nt")
a(f"global_load_dwordx4 {vr(vW2,4)}, {v(vOFF+0)}, s[42:43] nt")
stamp()
a("s_barrier")
for i in range(4):
    a(f"ds_read_b128 {vr(vQ+4*i,4)}, {v(vOFF+4)} offset:{L_QI+64*i}")
a(f"v_mov_b32 {T(0)}, 0")
a(f"ds_read_b32 {T(0)}, {T(0)} offset:{L_MODE}")
stamp()
a("s_waitcnt lgkmcnt(0)")
a(f"v_readfirstlane_b32 s63, {T(0)}")
for i in range(4):
    c = "0" if i == 0 else vr(vD, 4)
    a(f"v_mfma_f32_16x16x32_bf16 {vr(vD,4)}, {vr(vK+4*i,4)}, {vr(vQ+4*i,4)}, {c}")
DD = [v(vD+r) for r in range(4)]
dppstep("v_add_f32", DD, "quad_perm:[1,0,3,2]")
dppstep("v_add_f32", DD, "quad_perm:[2,3,0,1]")
def round4():
    a(f"v_cvt_pk_bf16_f32 {T(0)}, {v(vD)}, {v(vD+1)}")
    a(f"v_cvt_pk_bf16_f32 {T(1)}, {v(vD+2)}, {v(vD+3)}")
    a(f"v_lshlrev_b32 {v(vD)}, 16, {T(0)}")
    a(f"v_and_b32 {v(vD+1)}, 0xffff0000, {T(0)}")
    a(f"v_lshlrev_b32 {v(vD+2)}, 16, {T(1)}")
    a(f"v_and_b32 {v(vD+3)}, 0xffff0000, {T(1)}")
round4()
for r in range(4):
    a(f"v_mul_f32 {v(vD+r)}, s54, {v(vD+r)}")
round4()
a(f"v_max3_f32 {T(2)}, {v(vD)}, {v(vD+1)}, {v(vD+2)}")
a(f"v_max_f32 {T(2)}, {T(2)}, {v(vD+3)}")
swapred("v_max_f32", [T(2)], [T(4)], 16)
swapred("v_max_f32", [T(2)], [T(4)], 32)
for r in range(4):
    a(f"v_sub_f32 {v(vD+r)}, {v(vD+r)}, {T(2)}")
for r in range(4):
    a(f"v_mul_f32 {v(vD+r)}, s53, {v(vD+r)}")
for r in range(4):
    a(f"v_exp_f32 {v(vD+r)}, {v(vD+r)}")
a(f"v_add_f32 {T(3)}, {v(vD)}, {v(vD+1)}")
a(f"v_add_f32 {T(4)}, {v(vD+2)}, {v(vD+3)}")
a(f"v_cvt_pk_bf16_f32 {T(6)}, {v(vD)}, {v(vD+1)}")
a(f"v_cvt_pk_bf16_f32 {T(7)}, {v(vD+2)}, {v(vD+3)}")
a(f"v_add_f32 {T(3)}, {T(3)}, {T(4)}")
swapred("v_add_f32", [T(3)], [T(4)], 16)
swapred("v_add_f32", [T(3)], [T(4)], 32)
for h in range(4):
    for kq in range(4):
        a(f"v_readlane_b32 s{sP0+h*8+2*kq}, {T(6)}, {kq*16+h*4}")
        a(f"v_readlane_b32 s{sP0+h*8+2*kq+1}, {T(7)}, {kq*16+h*4}")
a(f"v_lshlrev_b32 {T(8)}, 1, {vL}")
a("s_lshl_b32 s49, s26, 5")
a(f"v_add_u32 {T(8)}, s49, {T(8)}")
exec_set(0x1111, 0)
a(f"ds_write_b64 {T(8)}, {vr(4,2)} offset:{L_ML}")
exec_all()
sec(3)
OA = [[v(vA+2*h), v(vA+2*h+1)] for h in range(4)]
def pv(t):
    a(f"v_perm_b32 {T(10)}, {v(vV+2*t+1)}, {v(vV+2*t)}, {SEL_LO}")
    a(f"v_perm_b32 {T(11)}, {v(vV+2*t+1)}, {v(vV+2*t)}, {SEL_HI}")
    for h in range(4):
        if t == 0:
            a(f"v_dot2_f32_bf16 {OA[h][0]}, {T(10)}, s{sP0+h*8+t}, 0")
            a(f"v_dot2_f32_bf16 {OA[h][1]}, {T(11)}, s{sP0+h*8+t}, 0")
        else:
            a(f"v_dot2_f32_bf16 {OA[h][0]}, {T(10)}, s{sP0+h*8+t}, {OA[h][0]}")
            a(f"v_dot2_f32_bf16 {OA[h][1]}, {T(11)}, s{sP0+h*8+t}, {OA[h][1]}")
a("s_waitcnt vmcnt(12)")
for t in range(4):
    pv(t)
a("s_waitcnt vmcnt(4)")
stamp()
for t in range(4, 8):
    pv(t)
a("s_lshl_b32 s49, s26, 11")
a(f"v_add_u32 {T(8)}, s49, {v(vOFF+12)}")
for h in range(4):
    a(f"ds_write_b64 {T(8)}, {vr(vA+2*h,2)} offset:{L_O+512*h}")
a("s_waitcnt lgkmcnt(0)")
a("s_barrier")
sec(4)
a("s_lshr_b32 s49, s26, 1")
a("s_lshl_b32 s55, s49, 3")
a(f"v_mov_b32 {T(16)}, s55")
a(f"v_and_b32 {T(15)}, 127, {vTID}")
a(f"v_lshlrev_b32 {T(17)}, 2, {T(15)}")
a("s_lshl_b32 s55, s49, 9")
a(f"v_add_u32 {T(17)}, s55, {T(17)}")
for w in range(8):
    a(f"ds_read_b64 {vr(vK+2*w,2)}, {T(16)} offset:{L_ML+32*w}")
for w in range(8):
    a(f"ds_read_b32 {v(vV+w)}, {T(17)} offset:{L_O+2048*w}")
a("s_lshr_b32 s49, s26, 1")
a(f"s_lshl_b32 s49, s49, {CS+3}")
a("s_lshl_b32 s55, s28, 8")
a("s_add_u32 s49, s49, s55")
a(f"s_add_u32 s49, s49, {R_O}")
a(f"v_lshrrev_b32 {T(8)}, 4, {T(15)}")
a(f"v_lshlrev_b32 {T(8)}, {CS}, {T(8)}")
a(f"v_and_b32 {T(6)}, 15, {T(15)}")
a(f"v_lshlrev_b32 {T(6)}, 3, {T(6)}")
a(f"v_add3_u32 {T(8)}, {T(8)}, {T(6)}, s49")
a(f"v_lshlrev_b32 {T(9)}, {CS}, {T(15)}")
a(f"v_add_u32 {T(9)}, s49, {T(9)}")
a(f"v_mov_b32 {T(4)}, s22")
a(f"v_mov_b32 {T(5)}, s23")
a("s_waitcnt lgkmcnt(0)")
a(f"v_max3_f32 {T(2)}, {v(vK)}, {v(vK+2)}, {v(vK+4)}")
a(f"v_max3_f32 {T(2)}, {T(2)}, {v(vK+6)}, {v(vK+8)}")
a(f"v_max3_f32 {T(2)}, {T(2)}, {v(vK+10)}, {v(vK+12)}")
a(f"v_max_f32 {T(2)}, {T(2)}, {v(vK+14)}")
for w in range(8):
    a(f"v_sub_f32 {v(vK+2*w)}, {v(vK+2*w)}, {T(2)}")
for w in range(8):
    a(f"v_mul_f32 {v(vK+2*w)}, s53, {v(vK+2*w)}")
for w in range(8):
    a(f"v_exp_f32 {v(vK+2*w)}, {v(vK+2*w)}")
a(f"v_mul_f32 {T(3)}, {v(vK)}, {v(vK+1)}")
a(f"v_mul_f32 {v(vG)}, {v(vK)}, {v(vV)}")
for w in range(1, 8):
    a(f"v_fmac_f32 {T(3)}, {v(vK+2*w)}, {v(vK+2*w+1)}")
    a(f"v_fmac_f32 {v(vG)}, {v(vK+2*w)}, {v(vV+w)}")
a(f"v_mov_b32_dpp {v(vG+1)}, {v(vG)} quad_perm:[1,0,3,2] {DPP}")
a(f"v_cmp_gt_u32 vcc, 8, {T(15)}")
a("s_cmp_eq_u32 s63, 0")
a("s_cbranch_scc0 L_oslow")
exec_set(0x55555555, 0x55555555)
a(f"global_store_dwordx4 {T(8)}, {vr(vG,4)}, s[56:57]")
exec_all()
a("s_and_saveexec_b64 s[50:51], vcc")
a("s_cbranch_execz L_opub")
a(f"global_store_dwordx4 {T(9)}, {vr(4,4)}, s[56:57] offset:128")
a("s_branch L_opub")
a.label("L_oslow")
exec_set(0x55555555, 0x55555555)
a(f"global_store_dwordx4 {T(8)}, {vr(vG,4)}, s[58:59] sc1")
exec_all()
a("s_and_saveexec_b64 s[50:51], vcc")
a("s_cbranch_execz L_opub")
a(f"global_store_dwordx4 {T(9)}, {vr(4,4)}, s[58:59] offset:128 sc1")
a.label("L_opub")
exec_all()
stamp()
a("s_waitcnt vmcnt(4)")
HA = [v(vA+8+i) for i in range(4)]
a(f"v_permlane32_swap_b32 {v(vW1+0)}, {v(vW1+2)}")
a(f"v_permlane32_swap_b32 {v(vW1+1)}, {v(vW1+3)}")
for c in range(2):
    a(f"v_perm_b32 {T(2*c)}, {v(vW1+2+c)}, {v(vW1+c)}, {SEL_LO}")
    a(f"v_perm_b32 {T(2*c+1)}, {v(vW1+2+c)}, {v(vW1+c)}, {SEL_HI}")
for i in range(4):
    a(f"v_dot2_f32_bf16 {HA[i]}, {T(i)}, {vXH}, 0")
red32("v_add_f32", HA, [T(i) for i in range(4)])
a(f"v_lshrrev_b32 {T(0)}, 5, {vL}")
a(f"v_lshlrev_b32 {T(2)}, 4, {T(0)}")
a("s_lshl_b32 s49, s26, 5")
a(f"v_add_u32 {T(2)}, s49, {T(2)}")
exec_set(1, 1)
a(f"ds_write_b128 {T(2)}, {vr(vA+8,4)} offset:{L_HP}")
exec_all()
PM, PO = vP, vP + 2
sec(5)
a("s_waitcnt vmcnt(0) lgkmcnt(0)")
a("s_barrier")
a("s_lshl_b32 s55, s26, 2")
a(f"v_mov_b32 {T(14)}, s55")
for w in range(8):
    a(f"ds_read_b32 {v(vV+8+w)}, {T(14)} offset:{L_HP+32*w}")
a(f"ds_read_b64 {vr(PM,2)}, {v(vOFF+10)} offset:{L_OI+64}")
a(f"ds_read_b64 {vr(PO,2)}, {v(vOFF+11)} offset:{L_OI}")
a("s_waitcnt lgkmcnt(0)")
sum8([v(vV+8+i) for i in range(8)], T(16))
bf16r(T(16), T(16), T(17))
a(f"v_max_f32 {T(16)}, 0, {T(16)}")
a(f"v_and_b32 {T(16)}, s48, {T(16)}")
a(f"v_mov_b32 {T(0)}, {v(PM)}")
red32("v_max_f32", [T(0)], [T(1)])
a(f"v_sub_f32 {T(0)}, {v(PM)}, {T(0)}")
a(f"v_mul_f32 {T(0)}, s53, {T(0)}")
a(f"v_exp_f32 {T(0)}, {T(0)}")
a(f"v_mul_f32 {T(1)}, {T(0)}, {v(PM+1)}")
a(f"v_mul_f32 {T(2)}, {T(0)}, {v(PO)}")
a(f"v_mul_f32 {T(3)}, {T(0)}, {v(PO+1)}")
red32("v_add_f32", [T(1), T(2), T(3)], [T(4), T(5), T(6)])
a(f"v_rcp_f32 {T(4)}, {T(1)}")
a(f"v_fma_f32 {T(5)}, -{T(1)}, {T(4)}, 1.0")
a(f"v_fma_f32 {T(4)}, {T(5)}, {T(4)}, {T(4)}")
a(f"v_mul_f32 {T(2)}, {T(2)}, {T(4)}")
a(f"v_mul_f32 {T(3)}, {T(3)}, {T(4)}")
a(f"v_cvt_pk_bf16_f32 {T(0)}, {T(2)}, {T(3)}")
for c in range(4):
    a(f"v_perm_b32 {T(2+2*c)}, {v(vWO+4+c)}, {v(vWO+c)}, {SEL_LO}")
    a(f"v_perm_b32 {T(3+2*c)}, {v(vWO+4+c)}, {v(vWO+c)}, {SEL_HI}")
for i in range(8):
    a(f"v_dot2_f32_bf16 {v(vA+i)}, {T(2+i)}, {T(0)}, 0")
for c in range(4):
    a(f"v_lshlrev_b32 {v(vA+8+2*c)}, 16, {v(vW2+c)}")
    a(f"v_and_b32 {v(vA+9+2*c)}, 0xffff0000, {v(vW2+c)}")
for i in range(8):
    a(f"v_mul_f32 {v(vA+8+i)}, {v(vA+8+i)}, {T(16)}")
a(f"v_lshlrev_b32 {T(10)}, 5, {vL}")
a("s_lshl_b32 s49, s26, 12")
a(f"v_add_u32 {T(10)}, s49, {T(10)}")
a(f"ds_write_b128 {T(10)}, {vr(vA,4)} offset:{L_AB}")
a(f"ds_write_b128 {T(10)}, {vr(vA+4,4)} offset:{L_AB+16}")
a(f"ds_write_b128 {T(10)}, {vr(vA+8,4)} offset:{L_AB+2048}")
a(f"ds_write_b128 {T(10)}, {vr(vA+12,4)} offset:{L_AB+2048+16}")
a("s_waitcnt lgkmcnt(0)")
a("s_barrier")
a(f"v_lshlrev_b32 {T(16)}, 2, {vTID}")
for w in range(8):
    a(f"ds_read_b32 {v(vK+w)}, {T(16)} offset:{L_AB+4096*w}")
    a(f"ds_read_b32 {v(vK+8+w)}, {T(16)} offset:{L_AB+4096*w+2048}")
a(f"v_lshrrev_b32 {T(6)}, 4, {vTID}")
a(f"v_lshlrev_b32 {T(6)}, {CS}, {T(6)}")
a(f"v_and_b32 {T(7)}, 15, {vTID}")
a(f"v_lshlrev_b32 {T(7)}, 4, {T(7)}")
a("s_lshl_b32 s49, s28, 8")
a(f"s_add_u32 s49, s49, {R_FA}")
a(f"v_add3_u32 {T(6)}, {T(6)}, {T(7)}, s49")
a("s_waitcnt lgkmcnt(0)")
sum8([v(vK+i) for i in range(8)], v(vG))
sum8([v(vK+8+i) for i in range(8)], v(vG+1))
a("s_cmp_eq_u32 s63, 0")
a("s_cbranch_scc0 L_faslow")
a(f"global_store_dwordx4 {T(6)}, {vr(vG,4)}, s[56:57]")
a("s_branch L_fapub")
a.label("L_faslow")
a(f"global_store_dwordx4 {T(6)}, {vr(vG,4)}, s[58:59] sc1")
a.label("L_fapub")
if STAMPS:
    a("s_cbranch_execz L_dry_done")
    a(f"s_cmp_lg_u32 s26, {STW}")
    a("s_cbranch_scc1 L_end")
    stamp()
    a(f"v_writelane_b32 {vST}, s52, 31")
    a("s_lshl_b32 s49, s2, 7")
    a(f"s_add_u32 s49, s49, {STAMP_OFF+0x100000:#x}")
    a(f"v_add_u32 {T(10)}, s49, {v(vOFF+5)}")
    exec_set(0xffffffff, 0)
    a(f"global_store_dword {T(10)}, {vST}, s[24:25]")
    exec_all()
a("s_cbranch_execz L_dry_done")
a("s_branch L_end")
a.label("L_comm")
a.raw("L_sec6:")
for i in range(4):
    a(f"v_mov_b32 {T(12+i)}, 0")
a("s_lshl_b32 s49, s28, 8")
a(f"s_add_u32 s50, s49, {R_O}")
a(f"s_add_u32 s51, s49, {R_FA}")
def prestore(sreg):
    a(f"v_add_u32 {T(11)}, {sreg}, {v(vOFF+3)}")
    for k in range(8):
        if k:
            a(f"v_add_u32 {T(11)}, {4<<CS}, {T(11)}")
        a(f"global_store_dwordx4 {T(11)}, {vr(14,4)}, s[56:57]")
a("s_waitcnt vmcnt(0)")
a(f"v_readfirstlane_b32 s22, {vE}")
a("s_add_u32 s22, s22, 1")
a("s_xor_b32 s23, s22, 0xa5c3a5c0")
a("s_xor_b32 s15, s23, s14")
a(f"v_mov_b32 {v(vG+2)}, s22")
a(f"v_mov_b32 {v(vG+3)}, s23")
stamp()
a("s_barrier")
a("s_barrier")
prestore("s50")
prestore("s51")
a("s_barrier")
QSH[0] = True
inbox_loads(v(vOFF+0), 8)
a("s_barrier")
a("s_waitcnt vmcnt(0)")
stamp()
sec("B5")
poll_loop("q", v(vOFF+0), 8, first_issued=True, tagcheck=tagcheck_q)
QSH[0] = False
for k in range(8):
    a(f"ds_write_b64 {v(vOFF+12)}, {vr(vP+4*k,2)} offset:{L_QI+512*k}")
a(f"v_cmp_ne_u32 vcc, 0, {T(3)}")
a("s_cmp_eq_u64 vcc, 0")
a("s_cselect_b32 s63, 0, 1")
a(f"v_mov_b32 {T(0)}, 0")
a(f"v_mov_b32 {T(1)}, s63")
a(f"ds_write_b32 {T(0)}, {T(1)} offset:{L_MODE}")
a("s_cmp_eq_u32 s63, 0")
a("s_cselect_b32 s64, s30, s34")
a("s_cselect_b32 s65, s31, s35")
a("s_cselect_b32 s66, s32, s60")
a("s_cselect_b32 s67, s33, s61")
a("s_waitcnt lgkmcnt(0)")
stamp()
a("s_barrier")
sec(7)
a("s_barrier")
stamp()
SELB[0] = True
poll_loop("o", v(vOFF+14), 8, dual=False)
for k in range(8):
    a(f"ds_write_b64 {v(vOFF+13)}, {vr(vP+4*k,2)} offset:{L_OI+512*k}")
a("s_waitcnt lgkmcnt(0)")
stamp()
a("s_barrier")
a("s_barrier")
stamp()
sec("B7")
poll_loop("fa", v(vOFF+15), 8, dual=False)
SELB[0] = False
stamp()
for c in range(2):
    sum8([v(vP+4*k+c) for k in range(8)], v(vG+c))
GG = [v(vG), v(vG+1)]
swapred("v_add_f32", GG, [T(0), T(1)], 16)
swapred("v_add_f32", GG, [T(0), T(1)], 32)
a("s_lshl_b32 s49, s27, 8")
a("s_add_u32 s49, s49, s3")
a(f"s_add_u32 s49, s49, {R_FB}")
a(f"v_add_u32 {T(0)}, s49, {v(vOFF+0)}")
exec_set(0xffff, 0)
a(f"global_store_dwordx4 {T(0)}, {vr(vG,4)}, s[24:25] sc1")
exec_all()
a("s_and_b32 s49, s28, 7")
a("s_cmp_lg_u32 s49, s27")
a("s_cbranch_scc1 L_fin")
a(f"v_lshlrev_b32 {T(10)}, 1, {vL}")
a("s_lshl_b32 s49, s28, 5")
a(f"v_add_u32 {T(10)}, s49, {T(10)}")
exec_set(0xffff, 0)
a(f"global_load_ushort {T(12)}, {T(10)}, s[4:5]")
exec_all()
a(f"v_add_u32 {T(11)}, {R_FB}, {v(vOFF+0)}")
poll_loop("fb", T(11), 2, dual=False)
a(f"v_add_f32 {v(vG)}, {v(vP)}, {v(vP+4)}")
a(f"v_add_f32 {v(vG+1)}, {v(vP+1)}, {v(vP+5)}")
swapred("v_add_f32", GG, [T(0), T(1)], 16)
swapred("v_add_f32", GG, [T(0), T(1)], 32)
a(f"v_cvt_pk_bf16_f32 {T(0)}, {v(vG)}, {v(vG+1)}")
a(f"v_lshlrev_b32 {T(1)}, 16, {T(0)}")
a(f"v_and_b32 {T(2)}, 0xffff0000, {T(0)}")
a(f"v_lshlrev_b32 {T(3)}, 16, {T(12)}")
a(f"v_add_f32 {T(1)}, {T(1)}, {T(3)}")
bf16r(T(1), T(1), T(4))
a(f"v_add_f32 {T(1)}, {T(1)}, {T(2)}")
a(f"v_cvt_pk_bf16_f32 {T(0)}, {T(1)}, {T(1)}")
exec_set(0xffff, 0)
a(f"global_store_short {T(10)}, {T(0)}, s[20:21]")
exec_all()
a("s_cmp_lg_u32 s2, 0")
a("s_cbranch_scc1 L_fin")
a(f"v_mov_b32 {T(1)}, {EPOCH:#x}")
a(f"v_mov_b32 {T(2)}, s22")
exec_set(1, 0)
a(f"global_store_dword {T(1)}, {T(2)}, s[24:25]")
exec_all()
a.label("L_fin")
a("s_cbranch_execz L_dry_done")
if DBGT:
    a("s_cmp_ge_u32 s2, 16")
    a("s_cbranch_scc1 L_end")
    a("s_memrealtime s[96:97]")
    a("s_load_dwordx2 s[94:95], s[0:1], 72")
    a("s_waitcnt lgkmcnt(0)")
    a("s_sub_u32 s96, s96, s98")
    a("s_lshl_b32 s49, s2, 2")
    a(f"v_mov_b32 {T(0)}, s49")
    a(f"v_mov_b32 {T(1)}, s96")
    exec_set(1, 0)
    a(f"global_store_dword {T(0)}, {T(1)}, s[94:95]")
    exec_all()
def stamp_store(extra):
    a(f"v_writelane_b32 {vST}, s52, 31")
    a("s_lshl_b32 s49, s2, 7")
    a(f"s_add_u32 s49, s49, {STAMP_OFF+extra:#x}")
    a(f"v_add_u32 {T(10)}, s49, {v(vOFF+5)}")
    exec_set(0xffffffff, 0)
    a(f"global_store_dword {T(10)}, {vST}, s[24:25]")
    exec_all()
if STAMPS:
    stamp()
    stamp_store(0)
a.label("L_end")
a("s_endpgm")
a.raw(f""".section .rodata,"a"
.p2align 6
.amdhsa_kernel {NAME}_kernel
  .amdhsa_next_free_vgpr {NVGPR}
  .amdhsa_next_free_sgpr 102
  .amdhsa_accum_offset {NVGPR}
  .amdhsa_group_segment_fixed_size 0
  .amdhsa_kernarg_size 88
  .amdhsa_user_sgpr_count 2
  .amdhsa_user_sgpr_kernarg_segment_ptr 1
  .amdhsa_system_sgpr_workgroup_id_x 1
  .amdhsa_float_denorm_mode_32 3
  .amdhsa_float_denorm_mode_16_64 3
.end_amdhsa_kernel""")

out = sys.argv[1]
open(out, "w").write(a.text())
```

```python
import sys
from asmlib import Asm

NAME = "parallel_sum__sliding_block_cached__dense_activation_relu__decode"
STAMPS = "--stamps" in sys.argv
DBGT = "--dbgt" in sys.argv
STW = 7 if "--w7" in sys.argv else 0
NA = int([x for x in sys.argv if x.startswith("--na=")][0][5:]) if any(x.startswith("--na=") for x in sys.argv) else 8
N1 = 8
SPIN_CAP = 400000

L_XN = 0
L_QP = 1024
L_QB = 3072
L_MODE = 3200
L_HP = 3328
L_ML = 3584
L_O = 4096
L_AB = 20480
L_QI = 53248
L_OI = 57344
LDS_BYTES = 90112

R_Q = 0
R_O = 8192
R_FA = 16384
R_FB = 24576
R_B = 32768
SH = 16
CS = SH + 3
STAMP_OFF = 20 << 20
EPOCH = 24 << 20

a = Asm()

vTID, vL = "v0", "v1"
def T(i): return f"v{2+i}"
vX = 20
vST = "v24"
vXP = "v25"
vWQ = 28
vW1 = 36
vK = 40
vV = 56
vWO = 72
vW2 = 80
vQ = 84
vD = 100
vA = 104
vOFF = 120
vP = 40
vXH = "v26"
vE = "v27"
vG = 136
NVGPR = 140
def v(i): return f"v{i}"
def vr(i, n): return f"v[{i}:{i+n-1}]"

SEL_LO, SEL_HI = "s46", "s47"
sP0 = 68
nstamp = [0]
def stamp():
    if not STAMPS: return
    i = nstamp[0]; nstamp[0] += 1
    a("s_memrealtime s[100:101]")
    a("s_waitcnt lgkmcnt(0)")
    a(f"v_writelane_b32 {vST}, s100, {i}")

DPP = "row_mask:0xf bank_mask:0xf"
def dppstep(op, regs, pat):
    for r in regs:
        a(f"{op}_dpp {r}, {r}, {r} {pat} {DPP}")
def red16(op, regs):
    for pat in ("quad_perm:[1,0,3,2]", "quad_perm:[2,3,0,1]", "row_half_mirror", "row_mirror"):
        dppstep(op, regs, pat)
def swapred(op, regs, tmps, which):
    for r, t in zip(regs, tmps):
        a(f"v_mov_b32 {t}, {r}")
    for r, t in zip(regs, tmps):
        a(f"v_permlane{which}_swap_b32 {r}, {t}")
    for r, t in zip(regs, tmps):
        a(f"{op} {r}, {r}, {t}")
def red32(op, regs, tmps):
    red16(op, regs); swapred(op, regs, tmps, 16)
def red64(op, regs, tmps):
    red32(op, regs, tmps); swapred(op, regs, tmps, 32)
def bf16r(dst, src, tmp):
    a(f"v_cvt_pk_bf16_f32 {tmp}, {src}, {src}")
    a(f"v_lshlrev_b32 {dst}, 16, {tmp}")
def exec_set(lo, hi):
    a(f"s_and_b32 exec_lo, s16, {lo:#x}")
    a(f"s_and_b32 exec_hi, s17, {hi:#x}")
def exec_all():
    a("s_mov_b64 exec, s[16:17]")
def sec(k):
    a("s_cbranch_execz L_dry_done")
    a._close()
    a.raw(f"L_sec{k}:")
def dry_enter(which, names):
    a(f"s_mov_b32 s19, {which}")
    a("s_mov_b32 s18, s26")
    a("s_mov_b64 s[16:17], 0")
    a("s_mov_b64 exec, 0")
    a("s_mov_b32 s26, 0")
    for k in range(1, 8):
        a(f"s_cmp_eq_u32 s18, {k}")
        a(f"s_cbranch_scc1 L_sec{names[k]}")
    a(f"s_branch L_sec{names[0]}")
def add64(dst, base, off):
    a(f"s_add_u32 s{dst}, s{base}, {off}")
    a(f"s_addc_u32 s{dst+1}, s{base+1}, 0")
def sum8(regs, dst):
    r = regs
    a(f"v_add_f32 {r[0]}, {r[0]}, {r[1]}")
    a(f"v_add_f32 {r[2]}, {r[2]}, {r[3]}")
    a(f"v_add_f32 {r[4]}, {r[4]}, {r[5]}")
    a(f"v_add_f32 {r[6]}, {r[6]}, {r[7]}")
    a(f"v_add_f32 {r[0]}, {r[0]}, {r[2]}")
    a(f"v_add_f32 {r[4]}, {r[4]}, {r[6]}")
    a(f"v_add_f32 {dst}, {r[0]}, {r[4]}")
SELB = [False]
QSH = [False]
def inbox_loads(offreg, n, b=False):
    if QSH[0]:
        base = "s[58:59]" if b else "s[56:57]"
        for k in range(n):
            off = v(vOFF+0) if k < 4 else v(vOFF+6)
            a(f"global_load_dwordx4 {vr(vP+4*k,4)}, {off}, {base} offset:{1024*(k%4)} sc1")
        return
    lo, hi = ("s[34:35]", "s[60:61]") if b else ("s[30:31]", "s[32:33]")
    if SELB[0]:
        lo, hi = "s[64:65]", "s[66:67]"
    for k in range(n):
        base = lo if k < 4 else hi
        a(f"global_load_dwordx4 {vr(vP+4*k,4)}, {offreg}, {base} offset:{1024*(k%4)} sc1")
def tagcheck(n):
    a(f"v_xor_b32 {T(0)}, s22, {v(vP+2)}")
    a(f"v_xor_b32 {T(1)}, s23, {v(vP+3)}")
    a(f"v_or_b32 {T(0)}, {T(0)}, {T(1)}")
    for k in range(1, n):
        a(f"v_xor_b32 {T(1)}, s22, {v(vP+4*k+2)}")
        a(f"v_xor_b32 {T(2)}, s23, {v(vP+4*k+3)}")
        a(f"v_or3_b32 {T(0)}, {T(0)}, {T(1)}, {T(2)}")
    a(f"v_cmp_ne_u32 vcc, 0, {T(0)}")
    a("s_cmp_eq_u64 vcc, 0")
def tagcheck_q(n):
    for k in range(n):
        a(f"v_xor_b32 {T(1)}, s22, {v(vP+4*k+2)}")
        a(f"v_xor_b32 {T(2)}, s15, {v(vP+4*k+3)}")
        if k == 0:
            a(f"v_mov_b32 {T(3)}, {T(2)}")
            a(f"v_mov_b32 {T(0)}, {T(1)}")
        else:
            a(f"v_or_b32 {T(3)}, {T(3)}, {T(2)}")
            a(f"v_or_b32 {T(0)}, {T(0)}, {T(1)}")
    a(f"v_and_b32 {T(2)}, -8, {T(3)}")
    a(f"v_or_b32 {T(0)}, {T(0)}, {T(2)}")
    a(f"v_cmp_ne_u32 vcc, 0, {T(0)}")
    a("s_cmp_eq_u64 vcc, 0")
def spin_guard():
    a("s_add_u32 s52, s52, 1")
    a(f"s_cmp_gt_u32 s52, {SPIN_CAP}")
    a("s_cbranch_scc1 L_end")
def poll_loop(name, offreg, n, first_issued=False, dual=True, tagcheck=tagcheck):
    if first_issued:
        tagcheck(n)
        a(f"s_cbranch_scc1 L_{name}_ok")
    a.label(f"L_{name}_loop")
    inbox_loads(offreg, n)
    spin_guard()
    a("s_waitcnt vmcnt(0)")
    tagcheck(n)
    if not dual:
        a(f"s_cbranch_scc0 L_{name}_loop")
    else:
        a(f"s_cbranch_scc1 L_{name}_ok")
        a("s_and_b32 s49, s52, 3")
        a("s_cmp_lg_u32 s49, 3")
        a(f"s_cbranch_scc1 L_{name}_loop")
        inbox_loads(offreg, n, b=True)
        a("s_waitcnt vmcnt(0)")
        tagcheck(n)
        a(f"s_cbranch_scc0 L_{name}_loop")
    a.label(f"L_{name}_ok")

a.raw(f"""; Kernarg layout: x, k_cache, v_cache, wq, wo, B_x, w1, w2, out, debug, ws (8-byte pointers)
; @launch grid=(256,1,1) block=(576,1,1) lds={LDS_BYTES}
.amdgcn_target "amdgcn-amd-amdhsa--gfx950"
.text
.globl {NAME}_kernel
.p2align 8
.type {NAME}_kernel,@function
{NAME}_kernel:""")

a("s_cmp_ge_u32 s2, 256")
a("s_cbranch_scc1 L_end")
a("s_load_dwordx16 s[4:19], s[0:1], 0")
a("s_load_dwordx4 s[20:23], s[0:1], 64")
a("s_load_dwordx2 s[24:25], s[0:1], 80")
if DBGT:
    a("s_memrealtime s[98:99]")
stamp()
a(f"v_and_b32 {vL}, 63, {vTID}")
a(f"v_lshrrev_b32 {T(0)}, 6, {vTID}")
a(f"v_readfirstlane_b32 s26, {T(0)}")
a("s_and_b32 s27, s2, 7")
a("s_lshr_b32 s28, s2, 3")
a(f"v_lshlrev_b32 {v(vOFF+0)}, 4, {vL}")
a(f"v_lshrrev_b32 {T(6)}, 3, {vL}")
a(f"v_and_b32 {T(7)}, 7, {vL}")
a(f"v_lshlrev_b32 {v(vOFF+1)}, 14, {T(6)}")
a(f"v_lshl_add_u32 {v(vOFF+1)}, {T(7)}, 4, {v(vOFF+1)}")
a(f"v_mov_b32 {T(8)}, {EPOCH:#x}")
a(f"v_and_b32 {T(9)}, 15, {vL}")
a(f"v_lshrrev_b32 {T(10)}, 4, {vL}")
a(f"v_lshlrev_b32 {v(vOFF+3)}, {CS}, {T(10)}")
a(f"v_lshl_add_u32 {v(vOFF+3)}, {T(9)}, 4, {v(vOFF+3)}")
a("s_and_b32 s49, s28, 7")
a("s_lshr_b32 s49, s49, 1")
a("s_lshl_b32 s49, s49, 2")
a("s_lshr_b32 s55, s28, 3")
a("s_add_u32 s49, s49, s55")
a("s_lshl_b32 s49, s49, 9")
a("s_and_b32 s55, s28, 1")
a("s_lshl_b32 s55, s55, 8")
a("s_add_u32 s62, s49, s55")
a("s_lshr_b32 s49, s28, 3")
a("s_lshl_b32 s49, s49, 7")
a("s_lshl_b32 s55, s26, 4")
a("s_add_u32 s49, s49, s55")
a("s_lshl_b32 s49, s49, 13")
a("s_lshl_b32 s55, s27, 10")
a("s_add_u32 s49, s49, s55")
a("s_and_b32 s55, s28, 7")
a("s_lshl_b32 s55, s55, 7")
a("s_add_u32 s49, s49, s55")
a(f"s_lshl_b32 s55, s27, {SH}")
a("s_waitcnt lgkmcnt(0)")
a("s_getreg_b32 s14, hwreg(HW_REG_XCC_ID, 0, 3)")
add64(56, 24, "s55")
add64(64, 10, "s49")
add64(66, 64, 8192)
a(f"global_load_dword {vE}, {T(8)}, s[24:25]")
a("s_cmp_eq_u32 s26, 8")
a("s_cbranch_scc1 L_touch")
a(f"global_load_dwordx4 {vr(vX,4)}, {v(vOFF+0)}, s[4:5]")
a(f"global_load_dwordx4 {vr(vWQ,4)}, {v(vOFF+1)}, s[64:65] nt")
a(f"global_load_dwordx4 {vr(vWQ+4,4)}, {v(vOFF+1)}, s[66:67] nt")
a("s_branch L_nold")
a.label("L_touch")
a(f"v_lshlrev_b32 {T(11)}, 20, {vL}")
a("s_mov_b32 exec_lo, 0xffff")
a("s_mov_b32 exec_hi, 0")
a(f"global_load_dword {v(vWQ)}, {T(11)}, s[24:25]")
a("s_mov_b32 exec_lo, 0xf")
a(f"global_load_dword {v(vWQ+1)}, {T(11)}, s[12:13]")
a("s_mov_b32 exec_lo, 0x3")
a(f"global_load_dword {v(vWQ+2)}, {T(11)}, s[16:17]")
a(f"global_load_dword {v(vWQ+3)}, {T(11)}, s[18:19]")
a("s_mov_b32 exec_lo, 0x1")
a(f"global_load_dword {v(vWQ+4)}, {T(11)}, s[20:21]")
a("s_lshl_b32 s50, s27, 24")
a("s_add_u32 s50, s50, 0xf00000")
a(f"v_mov_b32 {T(11)}, s50")
a(f"global_load_dword {v(vWQ+5)}, {T(11)}, s[8:9]")
a(f"global_load_dword {v(vWQ+6)}, {T(11)}, s[6:7]")
a("s_mov_b64 exec, -1")
a.label("L_nold")
a(f"v_lshlrev_b32 {v(vOFF+4)}, 8, {T(9)}")
a(f"v_lshl_add_u32 {v(vOFF+4)}, {T(10)}, 4, {v(vOFF+4)}")
a("s_lshl_b32 s50, s27, 24")
a("s_add_u32 s50, s50, 0xf00000")
a("s_lshl_b32 s55, s28, 15")
a("s_add_u32 s50, s50, s55")
a("s_lshl_b32 s55, s26, 12")
a("s_add_u32 s50, s50, s55")
add64(36, 6, "s50")
add64(38, 8, "s50")
add64(58, 56, R_B)
a(f"s_mov_b32 {SEL_LO}, 0x05040100")
a(f"s_mov_b32 {SEL_HI}, 0x07060302")
a("s_mov_b32 s53, 0x3fb8aa3b")
a("s_mov_b32 s54, 0x3db504f3")
a("s_mov_b32 s52, 0")
a("s_mul_i32 s29, s27, 28")
a("s_add_u32 s29, s29, s28")
a("s_cmp_lt_u32 s28, 28")
a("s_cselect_b32 s29, s29, 0")
a("s_cselect_b32 s48, -1, 0")
a(f"s_lshl_b32 s49, s2, {SH}")
add64(30, 24, "s49")
add64(32, 30, 4096)
add64(34, 30, R_B)
add64(60, 30, R_B + 4096)
a("s_mul_i32 s49, s26, 229376")
a("s_lshl_b32 s55, s29, 4")
a("s_add_u32 s49, s49, s55")
add64(44, 16, "s49")
a(f"v_and_b32 {T(6)}, 31, {vL}")
a(f"v_lshrrev_b32 {T(7)}, 5, {vL}")
a(f"v_lshl_add_u32 {T(8)}, {T(6)}, 1, {T(7)}")
a("s_movk_i32 s55, 3584")
a(f"v_mul_lo_u32 {v(vOFF+2)}, {T(8)}, s55")
a("s_lshl_b32 s49, s27, 2")
a("s_lshr_b32 s55, s28, 3")
a("s_add_u32 s49, s49, s55")
a("s_lshl_b32 s49, s49, 7")
a("s_and_b32 s55, s28, 7")
a("s_lshl_b32 s55, s55, 4")
a("s_add_u32 s49, s49, s55")
a("s_lshl_b32 s55, s26, 1")
a("s_add_u32 s49, s49, s55")
a("s_lshl_b32 s49, s49, 10")
add64(40, 12, "s49")
a("s_lshl_b32 s49, s29, 3")
a("s_add_u32 s49, s49, s26")
a("s_lshl_b32 s49, s49, 10")
add64(42, 18, "s49")
a(f"v_lshlrev_b32 {v(vOFF+5)}, 2, {vL}")
a(f"v_lshlrev_b32 {v(vOFF+10)}, 7, {T(6)}")
a("s_lshl_b32 s49, s26, 3")
a(f"v_add_u32 {v(vOFF+11)}, s49, {v(vOFF+10)}")
a("s_lshl_b32 s49, s28, 3")
a("s_and_b32 s55, s28, 7")
a("s_add_u32 s49, s49, s55")
a(f"s_lshl_b32 s3, s49, {SH}")
a(f"v_min_u32 {T(11)}, 8, {T(9)}")
a(f"v_lshlrev_b32 {T(12)}, 8, {T(10)}")
a(f"v_lshl_add_u32 {T(12)}, {T(11)}, 4, {T(12)}")
a(f"v_add_u32 {v(vOFF+14)}, {R_O}, {T(12)}")
a(f"v_lshlrev_b32 {T(12)}, 7, {T(10)}")
a(f"v_lshl_add_u32 {v(vOFF+13)}, {T(11)}, 3, {T(12)}")
a(f"v_add_u32 {v(vOFF+15)}, {R_FA}, {v(vOFF+0)}")
a(f"v_lshlrev_b32 {v(vOFF+12)}, 3, {vL}")
a(f"v_add_u32 {v(vOFF+6)}, 4096, {v(vOFF+0)}")

a("s_mov_b64 s[16:17], -1")
a("s_cmp_eq_u32 s26, 8")
a("s_cbranch_scc1 L_comm")
a.guard = True
dry_enter(0, ["0", "A1", "A2", "A3", "A4", "A5", "1", "A7"])
a.label("L_dry_done")
a("s_mov_b64 s[16:17], -1")
a("s_mov_b64 exec, -1")
a("s_mov_b32 s26, s18")
a("s_mov_b32 s52, 0")
a("s_cmp_eq_u32 s19, 1")
a("s_cbranch_scc1 L_retB")
a.raw("L_sec0:")
a("s_waitcnt vmcnt(2)")
stamp()
for i in range(4):
    a(f"global_load_dwordx4 {vr(vK+4*i,4)}, {v(vOFF+4)}, s[36:37] offset:{64*i} nt")
for k in range(NA):
    a(f"global_load_dword {v(vV+k)}, {v(vOFF+5)}, s[38:39] offset:{256*k} nt")
a(f"v_readfirstlane_b32 s22, {vE}")
a("s_add_u32 s22, s22, 1")
a("s_xor_b32 s23, s22, 0xa5c3a5c0")
a("s_xor_b32 s15, s23, s14")
a(f"v_mov_b32 {v(vG+2)}, s22")
a(f"v_mov_b32 {v(vG+3)}, s23")
for i in range(4):
    a(f"v_lshlrev_b32 {T(2*i)}, 16, {v(vX+i)}")
    a(f"v_and_b32 {T(2*i+1)}, 0xffff0000, {v(vX+i)}")
a(f"v_add_f32 {T(8)}, {T(0)}, {T(1)}")
a(f"v_add_f32 {T(9)}, {T(2)}, {T(3)}")
a(f"v_add_f32 {T(10)}, {T(4)}, {T(5)}")
a(f"v_add_f32 {T(11)}, {T(6)}, {T(7)}")
a(f"v_add_f32 {T(8)}, {T(8)}, {T(9)}")
a(f"v_add_f32 {T(10)}, {T(10)}, {T(11)}")
a(f"v_add_f32 {T(8)}, {T(8)}, {T(10)}")
sec("A1")
red64("v_add_f32", [T(8)], [T(9)])
a(f"v_mul_f32 {T(8)}, 0x3b000000, {T(8)}")
a(f"v_sub_f32 {T(9)}, {T(0)}, {T(8)}")
a(f"v_mul_f32 {T(10)}, {T(9)}, {T(9)}")
for i in range(1, 8):
    a(f"v_sub_f32 {T(9)}, {T(i)}, {T(8)}")
    a(f"v_fmac_f32 {T(10)}, {T(9)}, {T(9)}")
sec("A2")
red64("v_add_f32", [T(10)], [T(9)])
a(f"v_mul_f32 {T(10)}, 0x3b000000, {T(10)}")
bf16r(T(8), T(8), T(9))
bf16r(T(10), T(10), T(9))
a(f"v_add_f32 {T(10)}, 0x3727c5ac, {T(10)}")
bf16r(T(10), T(10), T(9))
sec("A3")
a(f"v_sqrt_f32 {T(10)}, {T(10)}")
bf16r(T(10), T(10), T(9))
a(f"v_rcp_f32 {T(11)}, {T(10)}")
a(f"v_fma_f32 {T(9)}, -{T(10)}, {T(11)}, 1.0")
a(f"v_fma_f32 {T(11)}, {T(9)}, {T(11)}, {T(11)}")
for i in range(8):
    a(f"v_sub_f32 {T(i)}, {T(i)}, {T(8)}")
for i in range(4):
    a(f"v_cvt_pk_bf16_f32 {T(12+i)}, {T(2*i)}, {T(2*i+1)}")
for i in range(4):
    a(f"v_lshlrev_b32 {T(2*i)}, 16, {T(12+i)}")
    a(f"v_and_b32 {T(2*i+1)}, 0xffff0000, {T(12+i)}")
sec("A4")
for i in range(8):
    a(f"v_mul_f32 {T(i)}, {T(i)}, {T(11)}")
for i in range(4):
    a(f"v_cvt_pk_bf16_f32 {T(12+i)}, {T(2*i)}, {T(2*i+1)}")
a(f"ds_write_b128 {v(vOFF+0)}, {vr(14,4)} offset:{L_XN}")
a(f"v_lshrrev_b32 {T(0)}, 3, {vL}")
a("s_lshr_b32 s49, s28, 3")
a("s_lshl_b32 s49, s49, 6")
a("s_lshl_b32 s55, s26, 3")
a("s_add_u32 s49, s49, s55")
a(f"v_add_lshl_u32 {T(0)}, {T(0)}, s49, 2")
a(f"v_and_b32 {T(1)}, 31, {vL}")
a("s_lshl_b32 s49, s26, 5")
a(f"v_add_lshl_u32 {T(1)}, {T(1)}, s49, 2")
a("s_waitcnt lgkmcnt(0)")
a(f"ds_read_b32 {vXP}, {T(0)} offset:{L_XN}")
a(f"ds_read_b32 {vXH}, {T(1)} offset:{L_XN}")

sec(1)
a(f"s_waitcnt vmcnt({4+NA}) lgkmcnt(0)")
stamp()
QA = [v(vA+i) for i in range(8)]
for c in range(4):
    a(f"v_perm_b32 {T(2*c)}, {v(vWQ+4+c)}, {v(vWQ+c)}, {SEL_LO}")
    a(f"v_perm_b32 {T(2*c+1)}, {v(vWQ+4+c)}, {v(vWQ+c)}, {SEL_HI}")
for i in range(8):
    a(f"v_dot2_f32_bf16 {QA[i]}, {T(i)}, {vXP}, 0")
dppstep("v_add_f32", QA, "row_ror:8")
sec("A5")
swapred("v_add_f32", QA, [T(i) for i in range(8)], 16)
swapred("v_add_f32", QA, [T(i) for i in range(8)], 32)
a(f"v_lshlrev_b32 {T(1)}, 5, {vL}")
a("s_lshl_b32 s49, s26, 8")
a(f"v_add_u32 {T(1)}, s49, {T(1)}")
exec_set(0xff, 0)
a(f"ds_write_b128 {T(1)}, {vr(vA,4)} offset:{L_QP}")
a(f"ds_write_b128 {T(1)}, {vr(vA+4,4)} offset:{L_QP+16}")
exec_all()
a("s_waitcnt lgkmcnt(0)")
a("s_barrier")
stamp()
sec("A7")
a("s_cmp_lg_u32 s26, 0")
a("s_cbranch_scc1 L_noq")
for w in range(8):
    a(f"ds_read_b32 {T(w)}, {v(vOFF+5)} offset:{L_QP+256*w}")
a("s_waitcnt lgkmcnt(0)")
sum8([T(i) for i in range(8)], T(0))
a(f"v_mov_b32_dpp {T(1)}, {T(0)} quad_perm:[1,0,3,2] {DPP}")
a(f"v_cvt_pk_bf16_f32 {T(2)}, {T(0)}, {T(1)}")
a(f"v_lshlrev_b32 {T(3)}, 1, {vL}")
exec_set(0x55555555, 0x55555555)
a(f"ds_write_b32 {T(3)}, {T(2)} offset:{L_QB}")
exec_all()
a(f"v_and_b32 {T(4)}, 15, {vL}")
a(f"v_lshlrev_b32 {T(5)}, 3, {T(4)}")
a("s_waitcnt lgkmcnt(0)")
a(f"ds_read_b64 {vr(vG,2)}, {T(5)} offset:{L_QB}")
a(f"v_add_u32 {T(1)}, s62, {v(vOFF+0)}")
a(f"v_mov_b32 {v(vG+3)}, s15")
a("s_waitcnt lgkmcnt(0)")
exec_set(0xffff, 0)
a(f"global_store_dwordx4 {T(1)}, {vr(vG,4)}, s[56:57]")
exec_all()
a.label("L_noq")
stamp()
sec(2)
a("s_barrier")
for k in range(NA, 16):
    a(f"global_load_dword {v(vV+k)}, {v(vOFF+5)}, s[38:39] offset:{256*k} nt")
a("s_cmp_lg_u32 s26, 0")
a("s_cbranch_scc1 L_noqa")
exec_set(0xffff, 0)
a(f"global_store_dwordx4 {T(1)}, {vr(vG,4)}, s[58:59] sc1")
exec_all()
a("s_nop 1")
a(f"v_mov_b32 {v(vG+3)}, s23")
a.label("L_noqa")
a("s_cbranch_execz L_dry_done")
dry_enter(1, ["B0", "3", "4", "5", "6", "B5", "7", "B7"])
a.label("L_retB")
a("s_cmp_lg_u32 s26, 0")
a("s_cbranch_scc1 L_noqc")
a(f"s_waitcnt vmcnt({17-NA})")
a("s_branch L_noqb")
a.label("L_noqc")
a(f"s_waitcnt vmcnt({16-NA})")
a.label("L_noqb")
stamp()
a.raw("L_secB0:")
a("s_barrier")
a("s_barrier")
a(f"global_load_dwordx4 {vr(vW1,4)}, {v(vOFF+2)}, s[44:45]")
a(f"global_load_dwordx4 {vr(vWO,4)}, {v(vOFF+0)}, s[40:41] nt")
a(f"global_load_dwordx4 {vr(vWO+4,4)}, {v(vOFF+0)}, s[40:41] offset:1024 nt")
a(f"global_load_dwordx4 {vr(vW2,4)}, {v(vOFF+0)}, s[42:43] nt")
stamp()
a("s_barrier")
for i in range(4):
    a(f"ds_read_b128 {vr(vQ+4*i,4)}, {v(vOFF+4)} offset:{L_QI+64*i}")
a(f"v_mov_b32 {T(0)}, 0")
a(f"ds_read_b32 {T(0)}, {T(0)} offset:{L_MODE}")
stamp()
a("s_waitcnt lgkmcnt(0)")
a(f"v_readfirstlane_b32 s63, {T(0)}")
for i in range(4):
    c = "0" if i == 0 else vr(vD, 4)
    a(f"v_mfma_f32_16x16x32_bf16 {vr(vD,4)}, {vr(vK+4*i,4)}, {vr(vQ+4*i,4)}, {c}")
DD = [v(vD+r) for r in range(4)]
dppstep("v_add_f32", DD, "quad_perm:[1,0,3,2]")
dppstep("v_add_f32", DD, "quad_perm:[2,3,0,1]")
def round4():
    a(f"v_cvt_pk_bf16_f32 {T(0)}, {v(vD)}, {v(vD+1)}")
    a(f"v_cvt_pk_bf16_f32 {T(1)}, {v(vD+2)}, {v(vD+3)}")
    a(f"v_lshlrev_b32 {v(vD)}, 16, {T(0)}")
    a(f"v_and_b32 {v(vD+1)}, 0xffff0000, {T(0)}")
    a(f"v_lshlrev_b32 {v(vD+2)}, 16, {T(1)}")
    a(f"v_and_b32 {v(vD+3)}, 0xffff0000, {T(1)}")
round4()
for r in range(4):
    a(f"v_mul_f32 {v(vD+r)}, s54, {v(vD+r)}")
round4()
a(f"v_max3_f32 {T(2)}, {v(vD)}, {v(vD+1)}, {v(vD+2)}")
a(f"v_max_f32 {T(2)}, {T(2)}, {v(vD+3)}")
swapred("v_max_f32", [T(2)], [T(4)], 16)
swapred("v_max_f32", [T(2)], [T(4)], 32)
for r in range(4):
    a(f"v_sub_f32 {v(vD+r)}, {v(vD+r)}, {T(2)}")
for r in range(4):
    a(f"v_mul_f32 {v(vD+r)}, s53, {v(vD+r)}")
for r in range(4):
    a(f"v_exp_f32 {v(vD+r)}, {v(vD+r)}")
a(f"v_add_f32 {T(3)}, {v(vD)}, {v(vD+1)}")
a(f"v_add_f32 {T(4)}, {v(vD+2)}, {v(vD+3)}")
a(f"v_cvt_pk_bf16_f32 {T(6)}, {v(vD)}, {v(vD+1)}")
a(f"v_cvt_pk_bf16_f32 {T(7)}, {v(vD+2)}, {v(vD+3)}")
a(f"v_add_f32 {T(3)}, {T(3)}, {T(4)}")
swapred("v_add_f32", [T(3)], [T(4)], 16)
swapred("v_add_f32", [T(3)], [T(4)], 32)
for h in range(4):
    for kq in range(4):
        a(f"v_readlane_b32 s{sP0+h*8+2*kq}, {T(6)}, {kq*16+h*4}")
        a(f"v_readlane_b32 s{sP0+h*8+2*kq+1}, {T(7)}, {kq*16+h*4}")
a(f"v_lshlrev_b32 {T(8)}, 1, {vL}")
a("s_lshl_b32 s49, s26, 5")
a(f"v_add_u32 {T(8)}, s49, {T(8)}")
exec_set(0x1111, 0)
a(f"ds_write_b64 {T(8)}, {vr(4,2)} offset:{L_ML}")
exec_all()
sec(3)
OA = [[v(vA+2*h), v(vA+2*h+1)] for h in range(4)]
def pv(t):
    a(f"v_perm_b32 {T(10)}, {v(vV+2*t+1)}, {v(vV+2*t)}, {SEL_LO}")
    a(f"v_perm_b32 {T(11)}, {v(vV+2*t+1)}, {v(vV+2*t)}, {SEL_HI}")
    for h in range(4):
        if t == 0:
            a(f"v_dot2_f32_bf16 {OA[h][0]}, {T(10)}, s{sP0+h*8+t}, 0")
            a(f"v_dot2_f32_bf16 {OA[h][1]}, {T(11)}, s{sP0+h*8+t}, 0")
        else:
            a(f"v_dot2_f32_bf16 {OA[h][0]}, {T(10)}, s{sP0+h*8+t}, {OA[h][0]}")
            a(f"v_dot2_f32_bf16 {OA[h][1]}, {T(11)}, s{sP0+h*8+t}, {OA[h][1]}")
a("s_waitcnt vmcnt(12)")
for t in range(4):
    pv(t)
a("s_waitcnt vmcnt(4)")
stamp()
for t in range(4, 8):
    pv(t)
a("s_lshl_b32 s49, s26, 11")
a(f"v_add_u32 {T(8)}, s49, {v(vOFF+12)}")
for h in range(4):
    a(f"ds_write_b64 {T(8)}, {vr(vA+2*h,2)} offset:{L_O+512*h}")
a("s_waitcnt lgkmcnt(0)")
a("s_barrier")
sec(4)
a("s_lshr_b32 s49, s26, 1")
a("s_lshl_b32 s55, s49, 3")
a(f"v_mov_b32 {T(16)}, s55")
a(f"v_and_b32 {T(15)}, 127, {vTID}")
a(f"v_lshlrev_b32 {T(17)}, 2, {T(15)}")
a("s_lshl_b32 s55, s49, 9")
a(f"v_add_u32 {T(17)}, s55, {T(17)}")
for w in range(8):
    a(f"ds_read_b64 {vr(vK+2*w,2)}, {T(16)} offset:{L_ML+32*w}")
for w in range(8):
    a(f"ds_read_b32 {v(vV+w)}, {T(17)} offset:{L_O+2048*w}")
a("s_lshr_b32 s49, s26, 1")
a(f"s_lshl_b32 s49, s49, {CS+3}")
a("s_lshl_b32 s55, s28, 8")
a("s_add_u32 s49, s49, s55")
a(f"s_add_u32 s49, s49, {R_O}")
a(f"v_lshrrev_b32 {T(8)}, 4, {T(15)}")
a(f"v_lshlrev_b32 {T(8)}, {CS}, {T(8)}")
a(f"v_and_b32 {T(6)}, 15, {T(15)}")
a(f"v_lshlrev_b32 {T(6)}, 3, {T(6)}")
a(f"v_add3_u32 {T(8)}, {T(8)}, {T(6)}, s49")
a(f"v_lshlrev_b32 {T(9)}, {CS}, {T(15)}")
a(f"v_add_u32 {T(9)}, s49, {T(9)}")
a(f"v_mov_b32 {T(4)}, s22")
a(f"v_mov_b32 {T(5)}, s23")
a("s_waitcnt lgkmcnt(0)")
a(f"v_max3_f32 {T(2)}, {v(vK)}, {v(vK+2)}, {v(vK+4)}")
a(f"v_max3_f32 {T(2)}, {T(2)}, {v(vK+6)}, {v(vK+8)}")
a(f"v_max3_f32 {T(2)}, {T(2)}, {v(vK+10)}, {v(vK+12)}")
a(f"v_max_f32 {T(2)}, {T(2)}, {v(vK+14)}")
for w in range(8):
    a(f"v_sub_f32 {v(vK+2*w)}, {v(vK+2*w)}, {T(2)}")
for w in range(8):
    a(f"v_mul_f32 {v(vK+2*w)}, s53, {v(vK+2*w)}")
for w in range(8):
    a(f"v_exp_f32 {v(vK+2*w)}, {v(vK+2*w)}")
a(f"v_mul_f32 {T(3)}, {v(vK)}, {v(vK+1)}")
a(f"v_mul_f32 {v(vG)}, {v(vK)}, {v(vV)}")
for w in range(1, 8):
    a(f"v_fmac_f32 {T(3)}, {v(vK+2*w)}, {v(vK+2*w+1)}")
    a(f"v_fmac_f32 {v(vG)}, {v(vK+2*w)}, {v(vV+w)}")
a(f"v_mov_b32_dpp {v(vG+1)}, {v(vG)} quad_perm:[1,0,3,2] {DPP}")
a(f"v_cmp_gt_u32 vcc, 8, {T(15)}")
a("s_cmp_eq_u32 s63, 0")
a("s_cbranch_scc0 L_oslow")
exec_set(0x55555555, 0x55555555)
a(f"global_store_dwordx4 {T(8)}, {vr(vG,4)}, s[56:57]")
exec_all()
a("s_and_saveexec_b64 s[50:51], vcc")
a("s_cbranch_execz L_opub")
a(f"global_store_dwordx4 {T(9)}, {vr(4,4)}, s[56:57] offset:128")
a("s_branch L_opub")
a.label("L_oslow")
exec_set(0x55555555, 0x55555555)
a(f"global_store_dwordx4 {T(8)}, {vr(vG,4)}, s[58:59] sc1")
exec_all()
a("s_and_saveexec_b64 s[50:51], vcc")
a("s_cbranch_execz L_opub")
a(f"global_store_dwordx4 {T(9)}, {vr(4,4)}, s[58:59] offset:128 sc1")
a.label("L_opub")
exec_all()
stamp()
a("s_waitcnt vmcnt(4)")
HA = [v(vA+8+i) for i in range(4)]
a(f"v_permlane32_swap_b32 {v(vW1+0)}, {v(vW1+2)}")
a(f"v_permlane32_swap_b32 {v(vW1+1)}, {v(vW1+3)}")
for c in range(2):
    a(f"v_perm_b32 {T(2*c)}, {v(vW1+2+c)}, {v(vW1+c)}, {SEL_LO}")
    a(f"v_perm_b32 {T(2*c+1)}, {v(vW1+2+c)}, {v(vW1+c)}, {SEL_HI}")
for i in range(4):
    a(f"v_dot2_f32_bf16 {HA[i]}, {T(i)}, {vXH}, 0")
red32("v_add_f32", HA, [T(i) for i in range(4)])
a(f"v_lshrrev_b32 {T(0)}, 5, {vL}")
a(f"v_lshlrev_b32 {T(2)}, 4, {T(0)}")
a("s_lshl_b32 s49, s26, 5")
a(f"v_add_u32 {T(2)}, s49, {T(2)}")
exec_set(1, 1)
a(f"ds_write_b128 {T(2)}, {vr(vA+8,4)} offset:{L_HP}")
exec_all()
PM, PO = vP, vP + 2
sec(5)
a("s_waitcnt vmcnt(0) lgkmcnt(0)")
a("s_barrier")
a("s_lshl_b32 s55, s26, 2")
a(f"v_mov_b32 {T(14)}, s55")
for w in range(8):
    a(f"ds_read_b32 {v(vV+8+w)}, {T(14)} offset:{L_HP+32*w}")
a(f"ds_read_b64 {vr(PM,2)}, {v(vOFF+10)} offset:{L_OI+64}")
a(f"ds_read_b64 {vr(PO,2)}, {v(vOFF+11)} offset:{L_OI}")
a("s_waitcnt lgkmcnt(0)")
sum8([v(vV+8+i) for i in range(8)], T(16))
bf16r(T(16), T(16), T(17))
a(f"v_max_f32 {T(16)}, 0, {T(16)}")
a(f"v_and_b32 {T(16)}, s48, {T(16)}")
a(f"v_mov_b32 {T(0)}, {v(PM)}")
red32("v_max_f32", [T(0)], [T(1)])
a(f"v_sub_f32 {T(0)}, {v(PM)}, {T(0)}")
a(f"v_mul_f32 {T(0)}, s53, {T(0)}")
a(f"v_exp_f32 {T(0)}, {T(0)}")
a(f"v_mul_f32 {T(1)}, {T(0)}, {v(PM+1)}")
a(f"v_mul_f32 {T(2)}, {T(0)}, {v(PO)}")
a(f"v_mul_f32 {T(3)}, {T(0)}, {v(PO+1)}")
red32("v_add_f32", [T(1), T(2), T(3)], [T(4), T(5), T(6)])
a(f"v_rcp_f32 {T(4)}, {T(1)}")
a(f"v_fma_f32 {T(5)}, -{T(1)}, {T(4)}, 1.0")
a(f"v_fma_f32 {T(4)}, {T(5)}, {T(4)}, {T(4)}")
a(f"v_mul_f32 {T(2)}, {T(2)}, {T(4)}")
a(f"v_mul_f32 {T(3)}, {T(3)}, {T(4)}")
a(f"v_cvt_pk_bf16_f32 {T(0)}, {T(2)}, {T(3)}")
for c in range(4):
    a(f"v_perm_b32 {T(2+2*c)}, {v(vWO+4+c)}, {v(vWO+c)}, {SEL_LO}")
    a(f"v_perm_b32 {T(3+2*c)}, {v(vWO+4+c)}, {v(vWO+c)}, {SEL_HI}")
for i in range(8):
    a(f"v_dot2_f32_bf16 {v(vA+i)}, {T(2+i)}, {T(0)}, 0")
for c in range(4):
    a(f"v_lshlrev_b32 {v(vA+8+2*c)}, 16, {v(vW2+c)}")
    a(f"v_and_b32 {v(vA+9+2*c)}, 0xffff0000, {v(vW2+c)}")
for i in range(8):
    a(f"v_mul_f32 {v(vA+8+i)}, {v(vA+8+i)}, {T(16)}")
a(f"v_lshlrev_b32 {T(10)}, 5, {vL}")
a("s_lshl_b32 s49, s26, 12")
a(f"v_add_u32 {T(10)}, s49, {T(10)}")
a(f"ds_write_b128 {T(10)}, {vr(vA,4)} offset:{L_AB}")
a(f"ds_write_b128 {T(10)}, {vr(vA+4,4)} offset:{L_AB+16}")
a(f"ds_write_b128 {T(10)}, {vr(vA+8,4)} offset:{L_AB+2048}")
a(f"ds_write_b128 {T(10)}, {vr(vA+12,4)} offset:{L_AB+2048+16}")
a("s_waitcnt lgkmcnt(0)")
a("s_barrier")
a(f"v_lshlrev_b32 {T(16)}, 2, {vTID}")
for w in range(8):
    a(f"ds_read_b32 {v(vK+w)}, {T(16)} offset:{L_AB+4096*w}")
    a(f"ds_read_b32 {v(vK+8+w)}, {T(16)} offset:{L_AB+4096*w+2048}")
a(f"v_lshrrev_b32 {T(6)}, 4, {vTID}")
a(f"v_lshlrev_b32 {T(6)}, {CS}, {T(6)}")
a(f"v_and_b32 {T(7)}, 15, {vTID}")
a(f"v_lshlrev_b32 {T(7)}, 4, {T(7)}")
a("s_lshl_b32 s49, s28, 8")
a(f"s_add_u32 s49, s49, {R_FA}")
a(f"v_add3_u32 {T(6)}, {T(6)}, {T(7)}, s49")
a("s_waitcnt lgkmcnt(0)")
sum8([v(vK+i) for i in range(8)], v(vG))
sum8([v(vK+8+i) for i in range(8)], v(vG+1))
a("s_cmp_eq_u32 s63, 0")
a("s_cbranch_scc0 L_faslow")
a(f"global_store_dwordx4 {T(6)}, {vr(vG,4)}, s[56:57]")
a("s_branch L_fapub")
a.label("L_faslow")
a(f"global_store_dwordx4 {T(6)}, {vr(vG,4)}, s[58:59] sc1")
a.label("L_fapub")
if STAMPS:
    a("s_cbranch_execz L_dry_done")
    a(f"s_cmp_lg_u32 s26, {STW}")
    a("s_cbranch_scc1 L_end")
    stamp()
    a(f"v_writelane_b32 {vST}, s52, 31")
    a("s_lshl_b32 s49, s2, 7")
    a(f"s_add_u32 s49, s49, {STAMP_OFF+0x100000:#x}")
    a(f"v_add_u32 {T(10)}, s49, {v(vOFF+5)}")
    exec_set(0xffffffff, 0)
    a(f"global_store_dword {T(10)}, {vST}, s[24:25]")
    exec_all()
a("s_cbranch_execz L_dry_done")
a("s_branch L_end")
a.label("L_comm")
a.raw("L_sec6:")
for i in range(4):
    a(f"v_mov_b32 {T(12+i)}, 0")
a("s_lshl_b32 s49, s28, 8")
a(f"s_add_u32 s50, s49, {R_O}")
a(f"s_add_u32 s51, s49, {R_FA}")
def prestore(sreg):
    a(f"v_add_u32 {T(11)}, {sreg}, {v(vOFF+3)}")
    for k in range(8):
        if k:
            a(f"v_add_u32 {T(11)}, {4<<CS}, {T(11)}")
        a(f"global_store_dwordx4 {T(11)}, {vr(14,4)}, s[56:57]")
a("s_waitcnt vmcnt(7)")
a(f"v_readfirstlane_b32 s22, {vE}")
a("s_add_u32 s22, s22, 1")
a("s_xor_b32 s23, s22, 0xa5c3a5c0")
a("s_xor_b32 s15, s23, s14")
a(f"v_mov_b32 {v(vG+2)}, s22")
a(f"v_mov_b32 {v(vG+3)}, s23")
stamp()
a("s_barrier")
a("s_barrier")
prestore("s50")
prestore("s51")
a("s_barrier")
QSH[0] = True
inbox_loads(v(vOFF+0), 8)
a("s_barrier")
a("s_waitcnt vmcnt(0)")
stamp()
sec("B5")
poll_loop("q", v(vOFF+0), 8, first_issued=True, tagcheck=tagcheck_q)
QSH[0] = False
for k in range(8):
    a(f"ds_write_b64 {v(vOFF+12)}, {vr(vP+4*k,2)} offset:{L_QI+512*k}")
a(f"v_cmp_ne_u32 vcc, 0, {T(3)}")
a("s_cmp_eq_u64 vcc, 0")
a("s_cselect_b32 s63, 0, 1")
a(f"v_mov_b32 {T(0)}, 0")
a(f"v_mov_b32 {T(1)}, s63")
a(f"ds_write_b32 {T(0)}, {T(1)} offset:{L_MODE}")
a("s_cmp_eq_u32 s63, 0")
a("s_cselect_b32 s64, s30, s34")
a("s_cselect_b32 s65, s31, s35")
a("s_cselect_b32 s66, s32, s60")
a("s_cselect_b32 s67, s33, s61")
a("s_waitcnt lgkmcnt(0)")
stamp()
a("s_barrier")
sec(7)
a("s_barrier")
stamp()
SELB[0] = True
poll_loop("o", v(vOFF+14), 8, dual=False)
for k in range(8):
    a(f"ds_write_b64 {v(vOFF+13)}, {vr(vP+4*k,2)} offset:{L_OI+512*k}")
a("s_waitcnt lgkmcnt(0)")
stamp()
a("s_barrier")
a("s_barrier")
stamp()
sec("B7")
poll_loop("fa", v(vOFF+15), 8, dual=False)
SELB[0] = False
stamp()
for c in range(2):
    sum8([v(vP+4*k+c) for k in range(8)], v(vG+c))
GG = [v(vG), v(vG+1)]
swapred("v_add_f32", GG, [T(0), T(1)], 16)
swapred("v_add_f32", GG, [T(0), T(1)], 32)
a("s_lshl_b32 s49, s27, 8")
a("s_add_u32 s49, s49, s3")
a(f"s_add_u32 s49, s49, {R_FB}")
a(f"v_add_u32 {T(0)}, s49, {v(vOFF+0)}")
exec_set(0xffff, 0)
a(f"global_store_dwordx4 {T(0)}, {vr(vG,4)}, s[24:25] sc1")
exec_all()
a("s_and_b32 s49, s28, 7")
a("s_cmp_lg_u32 s49, s27")
a("s_cbranch_scc1 L_fin")
a(f"v_lshlrev_b32 {T(10)}, 1, {vL}")
a("s_lshl_b32 s49, s28, 5")
a(f"v_add_u32 {T(10)}, s49, {T(10)}")
exec_set(0xffff, 0)
a(f"global_load_ushort {T(12)}, {T(10)}, s[4:5]")
exec_all()
a(f"v_add_u32 {T(11)}, {R_FB}, {v(vOFF+0)}")
poll_loop("fb", T(11), 2, dual=False)
a(f"v_add_f32 {v(vG)}, {v(vP)}, {v(vP+4)}")
a(f"v_add_f32 {v(vG+1)}, {v(vP+1)}, {v(vP+5)}")
swapred("v_add_f32", GG, [T(0), T(1)], 16)
swapred("v_add_f32", GG, [T(0), T(1)], 32)
a(f"v_cvt_pk_bf16_f32 {T(0)}, {v(vG)}, {v(vG+1)}")
a(f"v_lshlrev_b32 {T(1)}, 16, {T(0)}")
a(f"v_and_b32 {T(2)}, 0xffff0000, {T(0)}")
a(f"v_lshlrev_b32 {T(3)}, 16, {T(12)}")
a(f"v_add_f32 {T(1)}, {T(1)}, {T(3)}")
bf16r(T(1), T(1), T(4))
a(f"v_add_f32 {T(1)}, {T(1)}, {T(2)}")
a(f"v_cvt_pk_bf16_f32 {T(0)}, {T(1)}, {T(1)}")
exec_set(0xffff, 0)
a(f"global_store_short {T(10)}, {T(0)}, s[20:21]")
exec_all()
a("s_cmp_lg_u32 s2, 0")
a("s_cbranch_scc1 L_fin")
a(f"v_mov_b32 {T(1)}, {EPOCH:#x}")
a(f"v_mov_b32 {T(2)}, s22")
exec_set(1, 0)
a(f"global_store_dword {T(1)}, {T(2)}, s[24:25]")
exec_all()
a.label("L_fin")
a("s_cbranch_execz L_dry_done")
if DBGT:
    a("s_cmp_ge_u32 s2, 16")
    a("s_cbranch_scc1 L_end")
    a("s_memrealtime s[96:97]")
    a("s_load_dwordx2 s[94:95], s[0:1], 72")
    a("s_waitcnt lgkmcnt(0)")
    a("s_sub_u32 s96, s96, s98")
    a("s_lshl_b32 s49, s2, 2")
    a(f"v_mov_b32 {T(0)}, s49")
    a(f"v_mov_b32 {T(1)}, s96")
    exec_set(1, 0)
    a(f"global_store_dword {T(0)}, {T(1)}, s[94:95]")
    exec_all()
def stamp_store(extra):
    a(f"v_writelane_b32 {vST}, s52, 31")
    a("s_lshl_b32 s49, s2, 7")
    a(f"s_add_u32 s49, s49, {STAMP_OFF+extra:#x}")
    a(f"v_add_u32 {T(10)}, s49, {v(vOFF+5)}")
    exec_set(0xffffffff, 0)
    a(f"global_store_dword {T(10)}, {vST}, s[24:25]")
    exec_all()
if STAMPS:
    stamp()
    stamp_store(0)
a.label("L_end")
a("s_endpgm")
a.raw(f""".section .rodata,"a"
.p2align 6
.amdhsa_kernel {NAME}_kernel
  .amdhsa_next_free_vgpr {NVGPR}
  .amdhsa_next_free_sgpr 102
  .amdhsa_accum_offset {NVGPR}
  .amdhsa_group_segment_fixed_size 0
  .amdhsa_kernarg_size 88
  .amdhsa_user_sgpr_count 2
  .amdhsa_user_sgpr_kernarg_segment_ptr 1
  .amdhsa_system_sgpr_workgroup_id_x 1
  .amdhsa_float_denorm_mode_32 3
  .amdhsa_float_denorm_mode_16_64 3
.end_amdhsa_kernel""")

out = sys.argv[1]
open(out, "w").write(a.text())
```
